```python
import torch

def _softmax(x, axis=-1):
    return torch.softmax(x, dim=axis)
def _gelu(x):
    return torch.nn.functional.gelu(x, approximate="tanh")
def _silu(x):
    return torch.nn.functional.silu(x)
def _sigmoid(x):
    return torch.sigmoid(x)
def _layernorm(x, axis=-1, eps=1e-5):
    m = x.mean(dim=axis, keepdim=True)
    v = x.var(dim=axis, keepdim=True, unbiased=False)
    return (x - m) / torch.sqrt(v + eps)
def _scatter_add(tgt, idx, src, axis=0):
    return tgt.clone().index_add_(axis, idx, src)
def _segment_sum(src, seg, n):
    out = torch.zeros((n,) + src.shape[1:], dtype=src.dtype)
    return out.index_add_(0, seg, src)
def _pad(x, pw):
    flat = tuple(v for pair in reversed(pw) for v in pair)
    return torch.nn.functional.pad(x, flat)

kernel_name = 'standalone__edge_featured_mpnn_mpnn__graph'

def setup_inputs():

    _w = (lambda a: (lambda t: t.to(torch.bfloat16) if t.is_floating_point() else t)(torch.as_tensor(a)))
    N, deg, D, De = 10000, 16, 256, max(0, 1)
    E = N * deg
    H = 2 * D
    return {
        "x": _w((lambda *s: torch.randn(*s, dtype=torch.bfloat16) * 0.05)(N, D)),
        "e_attr": _w((lambda *s: torch.randn(*s, dtype=torch.bfloat16) * 1.6)(E, De)),
        "src": _w((lambda lo, hi, *s: torch.randint(lo, hi, s))(0, N, E).to(torch.int64)),
        "dst": _w((lambda lo, hi, *s: torch.randint(lo, hi, s))(0, N, E).to(torch.int64)),
        "w1": _w((lambda *s: torch.randn(*s, dtype=torch.bfloat16) * 1.6)(2 * D + De, H) * (1.0 / (2 * D + De) ** 0.5)),
        "b1": _w((lambda *s: torch.randn(*s, dtype=torch.bfloat16) * 0.8)(H) * 0.01),
        "w2": _w((lambda *s: torch.randn(*s, dtype=torch.bfloat16) * 0.05)(H, D) * (1.0 / H ** 0.5)),
        "b2": _w((lambda *s: torch.randn(*s, dtype=torch.bfloat16) * 0.05)(D) * 0.01),
    }

def reference(x, e_attr, src, dst, w1, b1, w2, b2):
    N, D = x.shape
    h_src = x[src]
    h_dst = x[dst]
    m_in = torch.concatenate([h_src, h_dst, e_attr], axis=-1)
    h = _silu(m_in @ w1 + b1)
    msg = h @ w2 + b2
    return _segment_sum(msg, dst, N)
```

```python
import re


class Asm:
    def __init__(self):
        self.lines = []

    def __call__(self, text):
        for ln in text.split("\n"):
            ln = ln.rstrip()
            if ln.strip():
                self.lines.append(ln if ln.strip().endswith(":") or ln.startswith(".") or ln.startswith(";") else "  " + ln.strip())

    def label(self, name):
        self.lines.append(name + ":")

    def text(self):
        return "\n".join(self.lines) + "\n"


def vr(a, n=1):
    return f"v{a}" if n == 1 else f"v[{a}:{a + n - 1}]"


def sr(a, n=1):
    return f"s{a}" if n == 1 else f"s[{a}:{a + n - 1}]"


class Alloc:
    def __init__(self, start, limit):
        self.n = start
        self.limit = limit

    def __call__(self, n=1, align=None):
        if align is None:
            align = 1 if n == 1 else 2
        self.n = (self.n + align - 1) // align * align
        a = self.n
        self.n += n
        assert self.n <= self.limit, f"out of registers: {self.n} > {self.limit}"
        return a


_REG = re.compile(r"(?<![\w.])([vsa])(?:(\d+)|\[(\d+):(\d+)\])")
TRANS = ("v_exp_", "v_log_", "v_rcp_", "v_rsq_", "v_sqrt_", "v_sin_", "v_cos_")


def regs_of(tok):
    out = set()
    for m in _REG.finditer(tok):
        k = m.group(1)
        if m.group(2) is not None:
            out.add((k, int(m.group(2))))
        else:
            for i in range(int(m.group(3)), int(m.group(4)) + 1):
                out.add((k, i))
    t = tok.strip()
    if re.search(r"\bvcc\b", t):
        out.add(("s", "vcc"))
    if re.search(r"\bexec\b", t):
        out.add(("s", "exec"))
    if re.search(r"\bm0\b", t):
        out.add(("s", "m0"))
    return out


def split_ops(s):
    ops, depth, cur = [], 0, ""
    for ch in s:
        if ch == "[":
            depth += 1
        if ch == "]":
            depth -= 1
        if ch == "," and depth == 0:
            ops.append(cur.strip())
            cur = ""
        else:
            cur += ch
    if cur.strip():
        ops.append(cur.strip())
    return ops


class Ins:
    def __init__(self, text, lineno):
        self.text = text
        self.lineno = lineno
        t = text.split(";")[0].strip()
        p = t.split(None, 1)
        self.mn = p[0]
        self.ops = split_ops(p[1]) if len(p) > 1 else []
        mn = self.mn
        self.valu = mn.startswith("v_")
        self.mfma = mn.startswith("v_mfma") or mn.startswith("v_smfmac")
        self.trans = mn.startswith(TRANS)
        self.salu = mn.startswith("s_")
        self.vmem = mn.startswith("buffer_") or mn.startswith("global_")
        self.ds = mn.startswith("ds_")
        self.dpp = "_dpp" in mn or any("row_" in o or "quad_perm" in o for o in self.ops)
        self.ldsdma = self.vmem and re.search(r"\blds\b", t) is not None
        d, s = set(), set()
        ops = self.ops
        self.srcc = set()
        self.srcab = set()
        self.data = set()
        if self.mfma:
            d = regs_of(ops[0])
            self.srcab = regs_of(ops[1]) | regs_of(ops[2])
            self.srcc = regs_of(ops[3]) if mn.startswith("v_mfma") else set(d)
            s = self.srcab | self.srcc | regs_of(ops[3])
            self.passes = 8 if "32x32" in mn else 4
        elif mn.startswith("v_cmpx"):
            d = regs_of(ops[0]) | {("s", "exec")}
            for o in ops[1:]:
                s |= regs_of(o)
        elif mn.startswith("v_permlane") and "swap" in mn:
            d = regs_of(ops[0]) | regs_of(ops[1])
            s = set(d)
        elif self.valu:
            d = regs_of(ops[0])
            k = 1
            if re.match(r"v_(add|sub|subrev|addc|subb)_co_", mn):
                d |= regs_of(ops[1])
                k = 2
            for o in ops[k:]:
                s |= regs_of(o)
            if mn.startswith(("v_fmac", "v_writelane")) or self.dpp:
                s |= regs_of(ops[0])
        elif self.vmem:
            if mn in ("buffer_inv", "buffer_wbl2"):
                pass
            elif self.ldsdma:
                for o in ops:
                    s |= regs_of(o)
                s.add(("s", "m0"))
            elif "_load" in mn:
                d = regs_of(ops[0])
                for o in ops[1:]:
                    s |= regs_of(o)
            else:
                for o in ops:
                    s |= regs_of(o)
                self.data = regs_of(ops[0])
                if "atomic" in mn and re.search(r"\bsc0\b", t):
                    d = regs_of(ops[0])
        elif self.ds:
            if "read" in mn or "rtn" in mn or "permute" in mn or "swizzle" in mn:
                d = regs_of(ops[0])
                for o in ops[1:]:
                    s |= regs_of(o)
            else:
                for o in ops:
                    s |= regs_of(o)
            if "addtid" in mn:
                s.add(("s", "m0"))
        elif self.salu:
            nodst = ("s_cmp", "s_waitcnt", "s_barrier", "s_nop", "s_branch", "s_cbranch", "s_endpgm",
                     "s_setprio", "s_sleep", "s_bitcmp")
            if mn.startswith(nodst):
                for o in ops:
                    s |= regs_of(o)
            else:
                d = regs_of(ops[0])
                for o in ops[1:]:
                    s |= regs_of(o)
                if "saveexec" in mn:
                    d.add(("s", "exec"))
        self.d, self.s = d, s
        self.states = 1
        if mn == "s_nop":
            self.states = int(ops[0], 0) + 1


def need(a, b):
    n = 0
    vd = {r for r in a.d if r[0] in "va"}
    sd = {r for r in a.d if r[0] == "s"}
    if a.mfma:
        p = a.passes
        if b.mfma:
            if vd & b.srcab:
                n = max(n, {4: 8, 8: 12}[p])
            if vd & b.srcc:
                exact = vd == b.srcc and a.passes == b.passes
                n = max(n, 0 if exact else {4: 6, 8: 10}[p])
            if (vd & b.d) and not (vd & b.srcc) and a.passes != b.passes:
                n = max(n, {4: 6, 8: 10}[p])
        elif (b.valu or b.vmem or b.ds) and (vd & (b.s | b.d)):
            n = max(n, {4: 8, 8: 12}[p])
        if b.valu and not b.mfma and (a.srcc & b.d):
            n = max(n, {4: 3, 8: 7}[p])
    elif a.valu:
        if b.mfma and (vd & b.s):
            n = max(n, 2)
        if b.mfma and ("s", "exec") in sd:
            n = max(n, 4)
        if b.valu and b.dpp and (vd & b.s):
            n = max(n, 2)
        if b.valu and b.dpp and ("s", "exec") in sd:
            n = max(n, 5)
        if b.mn.startswith("v_permlane") and (vd & b.s):
            n = max(n, 2)
        if b.mn.startswith(("v_readlane", "v_readfirstlane")) and (vd & b.s):
            n = max(n, 1)
        if b.mn.startswith(("v_readlane", "v_readfirstlane", "v_writelane", "v_permlane")) and ("s", "exec") in sd:
            n = max(n, 4)
        sx = sd - {("s", "exec")}
        if b.vmem and (sx & b.s):
            n = max(n, 5)
        if b.valu and (sx & b.s):
            n = max(n, 4 if b.mn.startswith(("v_readlane", "v_writelane")) else 2)
        if b.valu and ("s", "exec") in sd and ("s", "exec") in b.s:
            n = max(n, 2)
        if a.trans and b.valu and not b.trans and (vd & b.s):
            n = max(n, 1)
        if ("sdwa" in a.mn or any("op_sel:" in o for o in a.ops) and not a.mn.startswith("v_pk_")) and b.valu and (vd & (b.s | b.d)):
            n = max(n, 1)
    elif a.salu:
        if ("s", "m0") in sd and ("s", "m0") in b.s and (b.ldsdma or b.ds):
            n = max(n, 1)
    elif a.vmem and a.data and re.search(r"dwordx[34]", a.mn):
        if a.data & b.d:
            n = max(n, 2 if b.valu else 1)
    return n


def verify(text, maxdist=14):
    ins, labels = [], {}
    for no, ln in enumerate(text.split("\n"), 1):
        t = ln.split(";")[0].strip()
        if not t:
            continue
        if t.endswith(":"):
            labels[t[:-1]] = len(ins)
            continue
        if t.startswith("."):
            continue
        ins.append(Ins(t, no))
    bad = []

    def succ(i):
        x = ins[i]
        if x.mn == "s_endpgm":
            return []
        if x.mn == "s_branch":
            return [labels[x.ops[0]]]
        if x.mn.startswith("s_cbranch"):
            return [labels[x.ops[0]], i + 1]
        return [i + 1]

    for i, a in enumerate(ins):
        if not (a.valu or a.salu or a.vmem):
            continue
        seen = {}
        stack = [(j, 0) for j in succ(i)]
        while stack:
            j, dist = stack.pop()
            if j >= len(ins) or dist >= maxdist:
                continue
            if seen.get(j, 99) <= dist:
                continue
            seen[j] = dist
            b = ins[j]
            n = need(a, b)
            if n > dist:
                bad.append((a.lineno, a.text, b.lineno, b.text, n, dist))
            for k in succ(j):
                stack.append((k, dist + b.states))
    return bad
```

```python
from asmlib import Asm, Alloc, vr, sr
from layout import *

S_X, S_E, S_SRC, S_DST, S_W1, S_B1, S_W2, S_B2, S_OUT, S_DBG, S_WS = 4, 6, 8, 10, 12, 14, 16, 18, 20, 22, 24
S_WAVE = 26
S_XCD = 27


def srd(a, d, base, nbytes, off=None):
    if off is None:
        a(f"s_mov_b32 s{d}, s{base}")
        a(f"s_mov_b32 s{d+1}, s{base+1}")
    else:
        a(f"s_add_u32 s{d}, s{base}, {off}")
        a(f"s_addc_u32 s{d+1}, s{base+1}, 0")
    a(f"s_mov_b32 s{d+2}, {nbytes}")
    a(f"s_mov_b32 s{d+3}, 0x00020000")


def entry(a, tag):
    a(f"""
    s_cmp_ge_u32 s2, 256
    s_cbranch_scc1 {tag}_exit
    s_load_dwordx16 s[4:19], s[0:1], 0
    s_load_dwordx4 s[20:23], s[0:1], 64
    s_load_dwordx2 s[24:25], s[0:1], 80
    v_readfirstlane_b32 s{S_WAVE}, v0
    v_and_b32 v1, 63, v0
    s_lshr_b32 s{S_WAVE}, s{S_WAVE}, 6
    """)


def gemm_role(a, cfg):
    XS, WS_, OS, BS = 28, 32, 36, 40
    T0, NT, CB, CG, RG, WOFF, SC, TB, M0B, XO = 44, 45, 46, 47, 48, 49, 50, 51, 52, 53
    t1, t2 = 54, 55
    st_flags = cfg.get("k1_store", "sc1")
    v = Alloc(2, 256)
    vW = v(); vX = [v(), v()]; vTR = [v(), v()]; vA0 = v(); vST = v(); vBC = [v(), v()]
    vT = [v() for _ in range(4)]
    vAA = v(8)
    AF = v(16, 4)
    ACC = [v(16, 4), v(16, 4)]
    WF = v(128, 4)
    L = 1
    a.label("k1_gemm")
    a(f"""
    s_mul_i32 s{t1}, s{S_XCD}, 27
    s_add_u32 s3, s3, s{t1}
    s_sub_u32 s3, s3, 5
    s_and_b32 s{CB}, s3, 7
    s_lshr_b32 s3, s3, 3
    s_mul_i32 s{T0}, s3, {313*607}
    s_add_u32 s{NT}, s{T0}, {313*607}
    s_lshr_b32 s{T0}, s{T0}, 14
    s_lshr_b32 s{NT}, s{NT}, 14
    s_sub_u32 s{NT}, s{NT}, s{T0}
    s_and_b32 s{CG}, s{S_WAVE}, 1
    s_lshr_b32 s{RG}, s{S_WAVE}, 1
    s_lshr_b32 s{t1}, s{CB}, 2
    s_lshl_b32 s{WOFF}, s{t1}, 18
    s_and_b32 s{t2}, s{CB}, 3
    s_lshl_b32 s{t2}, s{t2}, 8
    s_add_u32 s{WOFF}, s{WOFF}, s{t2}
    s_lshl_b32 s{t2}, s{S_WAVE}, 15
    s_add_u32 s{WOFF}, s{WOFF}, s{t2}
    v_lshrrev_b32 v{vT[0]}, 4, v{L}
    v_and_b32 v{vT[1]}, 15, v{L}
    v_lshlrev_b32 v{vT[2]}, 2, v{vT[0]}
    v_xor_b32 v{vT[1]}, v{vT[1]}, v{vT[2]}
    v_lshlrev_b32 v{vT[1]}, 4, v{vT[1]}
    v_lshl_add_u32 v{vW}, v{vT[0]}, 10, v{vT[1]}
    s_lshl_b32 s{t2}, s{S_WAVE}, 2
    v_lshrrev_b32 v{vT[0]}, 5, v{L}
    v_add_u32 v{vT[0]}, s{t2}, v{vT[0]}
    v_and_b32 v{vT[1]}, 31, v{L}
    """)
    for i in range(2):
        a(f"""
        v_add_u32 v{vT[2]}, {2*i}, v{vT[0]}
        v_and_b32 v{vT[3]}, 15, v{vT[2]}
        v_xor_b32 v{vT[3]}, v{vT[3]}, v{vT[1]}
        v_lshlrev_b32 v{vT[3]}, 4, v{vT[3]}
        v_lshl_add_u32 v{vX[i]}, v{vT[2]}, 9, v{vT[3]}
        """)
    a("s_waitcnt lgkmcnt(0)")
    srd(a, WS_, S_W1, 513 * 1024)
    srd(a, XS, S_X, N * 512)
    a(f"s_lshl_b32 s{M0B}, s{S_WAVE}, 13")
    for i in range(8):
        a(f"""
        s_mov_b32 m0, s{M0B}
        s_add_u32 s{M0B}, s{M0B}, 1024
        buffer_load_dwordx4 v{vW}, s[{WS_}:{WS_+3}], s{WOFF} offen lds
        s_add_u32 s{WOFF}, s{WOFF}, 4096
        """)
    a(f"s_lshl_b32 s{XO}, s{T0}, 14")
    a(f"s_lshl_b32 s{M0B}, s{S_WAVE}, 11")

    def xload(slot_addr):
        for i in range(2):
            a(f"""
            s_add_u32 m0, s{M0B}, {slot_addr + 1024*i}
            s_nop 0
            buffer_load_dwordx4 v{vX[i]}, s[{XS}:{XS+3}], s{XO} offen lds
            """)
        a(f"s_add_u32 s{XO}, s{XO}, 16384")

    for j in range(6):
        xload(65536 + 16384 * j)
    a(f"""
    s_lshl_b32 s{t1}, s{CB}, 1
    s_add_u32 s{t1}, s{t1}, s{CG}
    s_mul_i32 s{t2}, s{t1}, {SL}
    """)
    srd(a, OS, S_WS, N * 128, off=f"s{t2}")
    srd(a, BS, S_B1, 1024)
    a(f"""
    s_cmp_ge_u32 s{CB}, 4
    s_cselect_b32 s{BS+2}, 1024, 0
    s_and_b32 s{t1}, s{t1}, 7
    s_lshl_b32 s{t1}, s{t1}, 7
    v_lshlrev_b32 v{vT[2]}, 1, v{vT[1]}
    s_mov_b32 s{SC}, {C_NLOG2E}
    buffer_load_ushort v{vBC[0]}, v{vT[2]}, s[{BS}:{BS+3}], s{t1} offen
    buffer_load_ushort v{vBC[1]}, v{vT[2]}, s[{BS}:{BS+3}], s{t1} offen offset:64
    v_lshrrev_b32 v{vT[0]}, 5, v{L}
    v_bfe_u32 v{vT[2]}, v{L}, 2, 2
    v_lshl_add_u32 v{vT[3]}, v{vT[0]}, 3, v{vT[2]}
    v_lshlrev_b32 v{vT[3]}, 8, v{vT[3]}
    v_bfe_u32 v{vTR[0]}, v{L}, 4, 1
    v_lshl_add_u32 v{vT[3]}, v{vTR[0]}, 5, v{vT[3]}
    v_and_b32 v{vTR[0]}, 3, v{L}
    v_lshl_add_u32 v{vT[3]}, v{vTR[0]}, 3, v{vT[3]}
    s_lshl_b32 s{t2}, s{CG}, 1
    v_xor_b32 v{vT[2]}, s{t2}, v{vT[2]}
    v_lshl_add_u32 v{vTR[0]}, v{vT[2]}, 6, v{vT[3]}
    v_xor_b32 v{vTR[1]}, 64, v{vTR[0]}
    v_and_b32 v{vT[2]}, 15, v{L}
    v_xor_b32 v{vT[2]}, v{vT[2]}, v{vT[0]}
    v_lshlrev_b32 v{vT[2]}, 4, v{vT[2]}
    v_lshl_add_u32 v{vA0}, v{vT[1]}, 9, v{vT[2]}
    v_lshlrev_b32 v{vT[2]}, 2, v{vT[1]}
    v_lshl_add_u32 v{vST}, v{vT[0]}, 9, v{vT[2]}
    s_waitcnt vmcnt(14)
    s_barrier
    """)
    for ks in range(16):
        for U in range(2):
            for u in range(2):
                r = WF + (ks * 2 + U) * 4 + 2 * u
                a(f"ds_read_b64_tr_b16 {vr(r,2)}, v{vTR[U]} offset:{ks*4096 + u*1024}")
    a(f"""
    s_waitcnt vmcnt(0)
    v_lshlrev_b32 v{vBC[0]}, 16, v{vBC[0]}
    v_lshlrev_b32 v{vBC[1]}, 16, v{vBC[1]}
    v_mul_f32 v{vBC[0]}, s{SC}, v{vBC[0]}
    v_mul_f32 v{vBC[1]}, s{SC}, v{vBC[1]}
    s_waitcnt lgkmcnt(0)
    s_barrier
    """)
    for j in range(4):
        xload(16384 * j)

    def one_round(r):
        lo = [65536, 65536 + 4 * 16384, 2 * 16384][r]
        hi = [65536, -2 * 16384, 65536 - 2 * 16384][r]
        a(f"""
        s_cmp_lt_u32 s{RG}, 2
        s_mov_b32 s{t2}, {hi & 0xffffffff}
        s_cselect_b32 s{TB}, {lo}, s{t2}
        s_lshl_b32 s{t1}, s{RG}, 14
        s_add_u32 s{TB}, s{TB}, s{t1}
        v_add_u32 v{vAA}, s{TB}, v{vA0}
        """)
        for k in range(1, 8):
            a(f"v_xor_b32 v{vAA+k}, {32*k}, v{vAA}")

        def rd(ks):
            a(f"ds_read_b128 {vr(AF + 4*(ks % 4), 4)}, v{vAA + ks % 8} offset:{256*(ks//8)}")
        for ks in range(4):
            rd(ks)
        a(f"""
        s_add_u32 s{t1}, s{T0}, s{RG}
        s_add_u32 s{t1}, s{t1}, {4*r}
        s_lshl_b32 s{t1}, s{t1}, 12
        """)
        for ks in range(16):
            a(f"s_waitcnt lgkmcnt({min(3, 15-ks)})")
            for U in range(2):
                c = "0" if ks == 0 else vr(ACC[U], 16)
                a(f"v_mfma_f32_32x32x16_bf16 {vr(ACC[U],16)}, {vr(AF + 4*(ks%4),4)}, {vr(WF + (ks*2+U)*4,4)}, {c}")
            if ks + 4 < 16:
                rd(ks + 4)
        a("s_nop 11")
        for i in range(16):
            a(f"v_fma_f32 v{ACC[0]+i}, v{ACC[0]+i}, s{SC}, v{vBC[0]}")
        for i in range(16):
            a(f"""
            v_fma_f32 v{ACC[1]+i}, v{ACC[1]+i}, s{SC}, v{vBC[1]}
            v_cvt_pk_bf16_f32 v{ACC[0]+i}, v{ACC[0]+i}, v{ACC[1]+i}
            buffer_store_dword v{ACC[0]+i}, v{vST}, s[{OS}:{OS+3}], s{t1} offen offset:{(8*(i//4) + i%4)*128} {st_flags}
            """)

    one_round(0)
    a("s_waitcnt vmcnt(20)\ns_barrier")
    for j in range(2):
        xload(65536 + 16384 * j)
    one_round(1)
    a("s_waitcnt vmcnt(16)\ns_barrier")
    a(f"""
    s_add_u32 s{t1}, s{RG}, 8
    s_cmp_ge_u32 s{t1}, s{NT}
    s_cbranch_scc1 k1_exit
    """)
    one_round(2)
    a("s_endpgm")
    return v.n


def prep_role(a, cfg):
    W2S, OS, W1S = 28, 32, 36
    t1, t2, SEL0, SEL1 = 40, 41, 42, 43
    L = 1
    vO, vT0, vT1, vT2, vS = 2, 3, 4, 5, 6
    LD, F = 8, 24
    a.label("k1_prep")
    a(f"""
    v_lshrrev_b32 v{vT0}, 4, v{L}
    v_and_b32 v{vT1}, 15, v{L}
    v_lshlrev_b32 v{vT1}, 2, v{vT1}
    v_lshl_add_u32 v{vO}, v{vT0}, 11, v{vT1}
    v_lshlrev_b32 v{vS}, 4, v{L}
    s_mov_b32 s{SEL0}, 0x05040100
    s_mov_b32 s{SEL1}, 0x07060302
    s_waitcnt lgkmcnt(0)
    """)
    srd(a, W2S, S_W2, 512 * 512)
    srd(a, OS, S_WS, WS_USED)
    srd(a, W1S, S_W1, 513 * 1024)
    a(f"""
    s_lshl_b32 s{t1}, s{S_WAVE}, 15
    s_lshl_b32 s{t2}, s{S_XCD}, 6
    s_add_u32 s{t1}, s{t1}, s{t2}
    """)
    for kk in range(2):
        for e in range(8):
            a(f"s_add_u32 s{t2}, s{t1}, {(16*kk + 32*(e & 1))*512}")
            a(f"buffer_load_dword v{LD + 8*kk + e}, v{vO}, s[{W2S}:{W2S+3}], s{t2} offen offset:{(e >> 1)*512}")
    a(f"""
    s_lshl_b32 s{t1}, s{S_XCD}, 15
    s_lshl_b32 s{t2}, s{S_WAVE}, 12
    s_add_u32 s{t1}, s{t1}, s{t2}
    s_add_u32 s{t1}, s{t1}, {OFF_W2F}
    """)
    for kk in range(2):
        a(f"s_waitcnt vmcnt({8 if kk == 0 else 2})")
        for U in range(2):
            f = F + 8 * kk + 4 * U
            for d in range(4):
                a(f"v_perm_b32 v{f+d}, v{LD+8*kk+2*d+1}, v{LD+8*kk+2*d}, s{SEL0+U}")
            a(f"buffer_store_dwordx4 {vr(f,4)}, v{vS}, s[{OS}:{OS+3}], s{t1} offen offset:{(2*kk+U)*1024} sc1")
    a(f"""
    s_cmp_eq_u32 s{S_WAVE}, 1
    s_cbranch_scc1 k1_prep_zero
    s_cmp_lg_u32 s{S_WAVE}, 0
    s_cbranch_scc1 k1_exit
    v_and_b32 v{vT0}, 1, v{L}
    v_lshlrev_b32 v{vT0}, 5, v{vT0}
    v_bfe_u32 v{vT1}, v{L}, 3, 1
    v_lshl_add_u32 v{vT0}, v{vT1}, 4, v{vT0}
    v_bfe_u32 v{vT1}, v{L}, 1, 2
    v_add_u32 v{vT0}, v{vT0}, v{vT1}
    v_lshlrev_b32 v{vT0}, 1, v{vT0}
    s_lshl_b32 s{t1}, s{S_XCD}, 7
    s_add_u32 s{t1}, s{t1}, {512*1024}
    """)
    for c in range(4):
        a(f"buffer_load_ushort v{40+c}, v{vT0}, s[{W1S}:{W1S+3}], s{t1} offen offset:{8*c}")
    a(f"""
    v_bfe_u32 v{vT1}, v{L}, 4, 1
    v_lshrrev_b32 v{vT2}, 5, v{L}
    v_cmp_eq_u32 vcc, v{vT1}, v{vT2}
    v_mov_b32 v{vT1}, {C_NLOG2E}
    v_lshlrev_b32 v{vT0}, 3, v{L}
    s_lshl_b32 s{t1}, s{S_XCD}, 9
    s_add_u32 s{t1}, s{t1}, {OFF_A3T}
    s_waitcnt vmcnt(0)
    """)
    for c in range(4):
        a(f"v_lshlrev_b32 v{40+c}, 16, v{40+c}")
        a(f"v_mul_f32 v{40+c}, v{40+c}, v{vT1}")
    a(f"""
    v_cvt_pk_bf16_f32 v44, v40, v41
    v_cvt_pk_bf16_f32 v45, v42, v43
    v_cndmask_b32 v44, 0, v44, vcc
    v_cndmask_b32 v45, 0, v45, vcc
    buffer_store_dwordx2 v[44:45], v{vT0}, s[{OS}:{OS+3}], s{t1} offen sc1
    s_endpgm
    """)
    a.label("k1_prep_zero")
    a(f"""
    v_lshrrev_b32 v{vT0}, 5, v{L}
    s_mov_b32 s{t1}, {OFF_Q}
    v_mul_lo_u32 v{vT0}, v{vT0}, s{t1}
    v_and_b32 v{vT1}, 31, v{L}
    v_lshl_add_u32 v{vT0}, v{vT1}, 2, v{vT0}
    s_mul_i32 s{t1}, s{S_XCD}, {SL}
    s_add_u32 s{t1}, s{t1}, {N*128}
    v_mov_b32 v{vT1}, 0
    buffer_store_dword v{vT1}, v{vT0}, s[{OS}:{OS+3}], s{t1} offen sc1
    s_endpgm
    """)


def sort_role(a, cfg):
    DS_, SS, ES, OS, DB = 28, 32, 36, 40, 44
    SW, t1, t2, HI, M313, PSZ, BASEID = 48, 49, 50, 51, 52, 53, 54
    EX = 56
    PC, FLAG, DH, GMAX, GMIN, CNT, RB, DUMMY, STG, OUT = 0, 128, 256, 512, 768, 1024, 3072, 8192, 12288, 69632
    L = 1
    v = Alloc(2, 128)
    vO8, vO4, vO16, vONE = v(), v(), v(), v()
    vT = [v() for _ in range(8)]
    vD = v(10); vS = v(10); vE = v(5)
    vPool = v(10); vSlot = v(14)
    vRec = v(28, 4)
    vGA = v(7)
    vFill = v(4, 4)
    a.label("k1_sort")
    a(f"""
    s_lshl_b32 s{SW}, s{S_XCD}, 2
    s_add_u32 s{SW}, s{SW}, s3
    v_lshlrev_b32 v{vO8}, 3, v0
    v_lshlrev_b32 v{vO4}, 2, v0
    v_lshlrev_b32 v{vO16}, 4, v0
    s_mul_i32 s{t1}, s{SW}, 20000
    s_mul_i32 s{t2}, s{SW}, 10000
    s_waitcnt lgkmcnt(0)
    """)
    srd(a, DS_, S_DST, E * 4)
    srd(a, SS, S_SRC, E * 4)
    srd(a, ES, S_E, E * 2)
    for i in range(5):
        a(f"""
        buffer_load_dwordx2 {vr(vD+2*i,2)}, v{vO8}, s[{DS_}:{DS_+3}], s{t1} offen
        buffer_load_dwordx2 {vr(vS+2*i,2)}, v{vO8}, s[{SS}:{SS+3}], s{t1} offen
        buffer_load_dword v{vE+i}, v{vO4}, s[{ES}:{ES+3}], s{t2} offen
        s_add_u32 s{t1}, s{t1}, 4096
        s_add_u32 s{t2}, s{t2}, 2048
        """)
    srd(a, OS, S_WS, WS_USED)
    srd(a, DB, S_DBG, 256)
    a(f"""
    v_mov_b32 v{vONE}, 1
    s_mov_b32 s{HI}, 0xffff0000
    s_mov_b32 s{M313}, -313
    v_lshrrev_b32 v{vT[0]}, 6, v0
    v_cmp_eq_u32 vcc, 3, v{vT[0]}
    v_mov_b32 v{vT[1]}, 0
    v_lshlrev_b32 v{vT[2]}, 2, v{L}
    v_cndmask_b32 v{vT[0]}, 0, -1, vcc
    ds_write_b32 v{vO4}, v{vT[0]}
    ds_write_b32 v{vO4}, v{vT[1]} offset:2048
    v_add_u32 v{vT[3]}, {DUMMY}, v{vT[2]}
    ds_write_b32 v{vO4}, v{vT[3]} offset:4096
    v_mov_b32 v{vFill}, 0
    v_add_u32 v{vFill+1}, {320*4}, v{vT[2]}
    v_mov_b32 v{vFill+2}, 0
    v_add_u32 v{vFill+3}, {320*4}, v{vT[2]}
    """)
    for i in range(7):
        a(f"ds_write_b128 v{vO16}, {vr(vFill,4)} offset:{STG + 8192*i}")
    a(f"v_add_u32 v{vT[4]}, {OUT}, v{vO16}")
    for k in range(4):
        a(f"v_mov_b32 v{vRec+k}, {N}")
    for i in range(6):
        a(f"ds_write_b128 v{vT[4]}, {vr(vRec,4)} offset:{8192*i}")
    a(f"s_mul_i32 s{t1}, s{SW}, 1792\ns_add_u32 s{t1}, s{t1}, {OFF_SEG}")
    for i in range(7):
        a(f"""
        v_add_u32 v{vT[0]}, {512*i}, v0
        v_mul_u32_u24 v{vT[1]}, 2341, v{vT[0]}
        v_lshrrev_b32 v{vT[1]}, 18, v{vT[1]}
        v_mul_u32_u24 v{vT[1]}, {31*1792}, v{vT[1]}
        v_lshl_add_u32 v{vGA+i}, v{vT[0]}, 4, v{vT[1]}
        """)
    a("s_waitcnt lgkmcnt(0)\ns_barrier")
    for k in range(10):
        i = k // 2
        if k % 2 == 0:
            a(f"s_waitcnt vmcnt({12 - 3*i})")
        if k == 8:
            a(f"v_cmp_gt_u32 vcc, 452, v0\ns_and_saveexec_b64 s[{EX}:{EX+1}], vcc")
        a(f"""
        v_mul_u32_u24 v{vPool+k}, 13401, v{vD+k}
        v_lshrrev_b32 v{vPool+k}, 22, v{vPool+k}
        v_lshlrev_b32 v{vT[k%2]}, 2, v{vPool+k}
        ds_add_rtn_u32 v{vSlot+k}, v{vT[k%2]}, v{vONE} offset:{PC}
        v_mad_i32_i24 v{vRec+2*k+1}, v{vPool+k}, s{M313}, v{vD+k}
        v_lshlrev_b32 v{vRec+2*k+1}, 2, v{vRec+2*k+1}
        v_mul_u32_u24 v{vPool+k}, 1792, v{vPool+k}
        """)
        if k % 2 == 0:
            a(f"v_lshl_or_b32 v{vRec+2*k}, v{vE+i}, 16, v{vS+k}")
        else:
            a(f"v_and_or_b32 v{vRec+2*k}, v{vE+i}, s{HI}, v{vS+k}")
    a(f"s_mov_b64 exec, s[{EX}:{EX+1}]")
    a(f"v_mov_b32 v{vT[2]}, {384*4}")
    for k in range(10):
        if k == 8:
            a(f"v_cmp_gt_u32 vcc, 452, v0\ns_and_saveexec_b64 s[{EX}:{EX+1}], vcc")
        a(f"""
        s_waitcnt lgkmcnt(9)
        v_cmp_lt_u32 vcc, 222, v{vSlot+k}
        v_min_u32 v{vSlot+k}, 223, v{vSlot+k}
        v_lshl_add_u32 v{vPool+k}, v{vSlot+k}, 3, v{vPool+k}
        v_cndmask_b32 v{vRec+2*k+1}, v{vRec+2*k+1}, v{vT[2]}, vcc
        ds_write_b64 v{vPool+k}, {vr(vRec+2*k,2)} offset:{STG}
        """)
    a(f"s_mov_b64 exec, s[{EX}:{EX+1}]")
    a("s_waitcnt lgkmcnt(0)\ns_barrier")
    for i in range(7):
        a(f"ds_read_b128 {vr(vRec+4*i,4)}, v{vO16} offset:{STG + 8192*i}")
    for i in range(7):
        a(f"s_waitcnt lgkmcnt({6-i})")
        a(f"buffer_store_dwordx4 {vr(vRec+4*i,4)}, v{vGA+i}, s[{OS}:{OS+3}], s{t1} offen sc1")
    a(f"""
    s_waitcnt vmcnt(0)
    s_barrier
    s_cmp_lg_u32 s{S_WAVE}, 0
    s_cbranch_scc1 k1_sort_go
    s_mov_b64 exec, 1
    buffer_atomic_add v{vONE}, off, s[{DB}:{DB+3}], 0 sc1
    s_mov_b32 s{t1}, 0
    """)
    a.label("k1_sort_poll")
    a(f"""
    buffer_load_dword v{vT[0]}, off, s[{DB}:{DB+3}], 0 sc1
    s_add_u32 s{t1}, s{t1}, 1
    s_waitcnt vmcnt(0)
    v_readfirstlane_b32 s{t2}, v{vT[0]}
    s_cmp_ge_u32 s{t2}, 32
    s_cbranch_scc1 k1_sort_seen
    s_cmp_lt_u32 s{t1}, {cfg.get('poll_limit', 20000)}
    s_cbranch_scc1 k1_sort_poll
    v_mov_b32 v{vT[0]}, {FLAG}
    ds_write_b32 v{vT[0]}, v{vONE}
    s_waitcnt lgkmcnt(0)
    """)
    a.label("k1_sort_seen")
    a("s_mov_b64 exec, -1")
    a.label("k1_sort_go")
    a(f"""
    s_barrier
    s_mul_i32 s{t1}, s{SW}, 57344
    s_add_u32 s{t1}, s{t1}, {OFF_SEG}
    """)
    for i in range(7):
        a(f"buffer_load_dwordx4 {vr(vRec+4*i,4)}, v{vO16}, s[{OS}:{OS+3}], s{t1} offen sc1")
        a(f"s_add_u32 s{t1}, s{t1}, 8192")
    a(f"""
    v_mov_b32 v{vT[0]}, {FLAG}
    ds_read_b32 v{vT[0]}, v{vT[0]}
    s_mul_i32 s{BASEID}, s{SW}, 313
    s_sub_u32 s{PSZ}, {N}, s{BASEID}
    s_min_u32 s{PSZ}, s{PSZ}, 313
    s_waitcnt lgkmcnt(0)
    v_readfirstlane_b32 s{t2}, v{vT[0]}
    s_cmp_lg_u32 s{t2}, 0
    s_cbranch_scc1 k1_sort_s4
    """)
    for i in range(7):
        a(f"s_waitcnt vmcnt({6-i})")
        for j in range(2):
            r = vRec + 4 * i + 2 * j + 1
            a(f"ds_add_rtn_u32 v{vSlot+2*i+j}, v{r}, v{vONE} offset:{CNT}")
    vd, vkey, vr_, vpos, vG, vm, vtt, vk = vD, vD + 1, vD + 2, vD + 3, vD + 4, vD + 5, vD + 6, vD + 7
    vg = vS
    a(f"""
    s_waitcnt lgkmcnt(0)
    s_barrier
    s_cmp_ge_u32 s{S_WAVE}, 5
    s_cbranch_scc1 k1_sort_s1
    ds_read_b32 v{vd}, v{vO4} offset:{CNT}
    s_waitcnt lgkmcnt(0)
    v_min_u32 v{vkey}, 63, v{vd}
    v_sub_u32 v{vkey}, 63, v{vkey}
    v_lshlrev_b32 v{vkey}, 2, v{vkey}
    ds_add_rtn_u32 v{vr_}, v{vkey}, v{vONE} offset:{DH}
    s_waitcnt lgkmcnt(0)
    """)
    a.label("k1_sort_s1")
    a(f"""
    s_barrier
    s_cmp_ge_u32 s{S_WAVE}, 5
    s_cbranch_scc1 k1_sort_s2
    v_lshlrev_b32 v{vT[0]}, 2, v{L}
    ds_read_b32 v{vT[1]}, v{vT[0]} offset:{DH}
    s_waitcnt lgkmcnt(0)
    v_mov_b32 v{vT[2]}, v{vT[1]}
    """)
    for sh in (1, 2, 4, 8):
        a(f"s_nop 1\nv_add_u32_dpp v{vT[2]}, v{vT[2]}, v{vT[2]} row_shr:{sh} row_mask:0xf bank_mask:0xf bound_ctrl:1")
    a(f"s_nop 1\nv_add_u32_dpp v{vT[2]}, v{vT[2]}, v{vT[2]} row_bcast:15 row_mask:0xa bank_mask:0xf")
    a(f"s_nop 1\nv_add_u32_dpp v{vT[2]}, v{vT[2]}, v{vT[2]} row_bcast:31 row_mask:0xc bank_mask:0xf")
    a(f"""
    v_sub_u32 v{vT[2]}, v{vT[2]}, v{vT[1]}
    ds_bpermute_b32 v{vpos}, v{vkey}, v{vT[2]}
    s_waitcnt lgkmcnt(0)
    v_add_u32 v{vpos}, v{vpos}, v{vr_}
    v_lshrrev_b32 v{vG}, 3, v{vpos}
    v_and_b32 v{vm}, 7, v{vpos}
    v_lshlrev_b32 v{vT[0]}, 2, v{vG}
    ds_max_u32 v{vT[0]}, v{vd} offset:{GMAX}
    ds_min_u32 v{vT[0]}, v{vd} offset:{GMIN}
    v_lshrrev_b32 v{vtt}, 3, v{vG}
    v_and_b32 v{vk}, 7, v{vG}
    v_lshrrev_b32 v{vT[1]}, v{vtt}, 26
    v_and_b32 v{vT[1]}, 1, v{vT[1]}
    v_mul_u32_u24 v{vT[1]}, 7, v{vT[1]}
    v_xor_b32 v{vk}, v{vk}, v{vT[1]}
    s_waitcnt lgkmcnt(0)
    """)
    a.label("k1_sort_s2")
    a(f"""
    s_barrier
    s_cmp_ge_u32 s{S_WAVE}, 5
    s_cbranch_scc1 k1_sort_s3
    v_lshlrev_b32 v{vT[1]}, 2, v{vk}
    v_xor_b32 v{vT[2]}, 28, v{vT[1]}
    ds_read_b32 v{vg+0}, v{vT[1]} offset:{GMAX}
    ds_read_b32 v{vg+1}, v{vT[2]} offset:{GMAX+32}
    ds_read_b32 v{vg+2}, v{vT[1]} offset:{GMAX+64}
    ds_read_b32 v{vg+3}, v{vT[2]} offset:{GMAX+96}
    ds_read_b32 v{vg+4}, v{vT[2]} offset:{GMAX+128}
    ds_read_b32 v{vg+5}, v{vT[0]} offset:{GMAX}
    ds_read_b32 v{vg+6}, v{vT[0]} offset:{GMIN}
    v_mov_b32 v{vT[3]}, {CNT + 384*4}
    ds_read_b32 v{vg+7}, v{vT[3]}
    v_mov_b32 v{vT[4]}, 0
    v_mov_b32 v{vT[5]}, 0
    s_waitcnt lgkmcnt(0)
    """)
    for t in range(5):
        a(f"""
        v_add_u32 v{vg+t}, 1, v{vg+t}
        v_lshrrev_b32 v{vg+t}, 1, v{vg+t}
        v_cmp_lt_u32 vcc, {t}, v{vtt}
        v_max_u32 v{vg+t}, 1, v{vg+t}
        v_add_u32 v{vT[5]}, v{vT[5]}, v{vg+t}
        v_cndmask_b32 v{vT[6]}, 0, v{vg+t}, vcc
        v_add_u32 v{vT[4]}, v{vT[4]}, v{vT[6]}
        """)
    a(f"""
    v_cmp_lt_u32 vcc, {MAXT}, v{vT[5]}
    v_cmp_ne_u32 s[{EX}:{EX+1}], 0, v{vg+7}
    s_or_b64 vcc, vcc, s[{EX}:{EX+1}]
    s_cbranch_vccz k1_sort_ok
    v_mov_b32 v{vT[3]}, {FLAG}
    ds_write_b32 v{vT[3]}, v{vONE}
    """)
    a.label("k1_sort_ok")
    a(f"""
    v_mul_u32_u24 v{vT[1]}, {MEMB}, v{vk}
    v_add_u32 v{vT[1]}, {OUT}, v{vT[1]}
    v_lshl_add_u32 v{vT[2]}, v{vm}, 2, v{vT[1]}
    v_lshl_add_u32 v{vT[3]}, v{vT[4]}, 6, v{vT[2]}
    v_add_u32 v{vT[3]}, 256, v{vT[3]}
    ds_write_b32 v{vO4}, v{vT[3]} offset:{RB}
    v_cmp_gt_u32 vcc, s{PSZ}, v0
    v_add_u32 v{vT[3]}, s{BASEID}, v0
    v_mov_b32 v{vT[6]}, {N}
    v_cndmask_b32 v{vT[3]}, v{vT[6]}, v{vT[3]}, vcc
    v_lshl_or_b32 v{vT[3]}, v{vd}, 16, v{vT[3]}
    v_lshl_add_u32 v{vT[2]}, v{vtt}, 5, v{vT[2]}
    ds_write_b32 v{vT[2]}, v{vT[3]}
    v_lshl_or_b32 v{vT[4]}, v{vg+5}, 8, v{vT[4]}
    v_lshl_or_b32 v{vT[4]}, v{vg+6}, 16, v{vT[4]}
    v_lshl_add_u32 v{vT[1]}, v{vtt}, 2, v{vT[1]}
    ds_write_b32 v{vT[1]}, v{vT[4]} offset:192
    s_waitcnt lgkmcnt(0)
    """)
    a.label("k1_sort_s3")
    a(f"""
    s_barrier
    v_mov_b32 v{vT[0]}, {FLAG}
    ds_read_b32 v{vT[0]}, v{vT[0]}
    """)
    for k in range(14):
        a(f"ds_read_b32 v{vPool + k if k < 10 else vE + k - 10}, v{vRec+2*k+1} offset:{RB}")
    a(f"""
    s_waitcnt lgkmcnt(14)
    v_readfirstlane_b32 s{t2}, v{vT[0]}
    s_cmp_lg_u32 s{t2}, 0
    s_cbranch_scc1 k1_sort_s4
    """)
    for k in range(14):
        b = vPool + k if k < 10 else vE + k - 10
        a(f"""
        s_waitcnt lgkmcnt(13)
        v_lshl_add_u32 v{b}, v{vSlot+k}, 5, v{b}
        ds_write_b32 v{b}, v{vRec+2*k}
        """)
    a.label("k1_sort_s4")
    a(f"""
    s_waitcnt vmcnt(0)
    v_and_b32 v{vT[1]}, 7, v0
    v_mul_u32_u24 v{vT[1]}, {MEMB}, v{vT[1]}
    v_add_u32 v{vT[1]}, {OUT}, v{vT[1]}
    ds_write_b32 v{vT[1]}, v{vT[0]} offset:212
    s_mul_i32 s{t1}, s{SW}, {8*MEMB}
    s_add_u32 s{t1}, s{t1}, {OFF_LIST}
    v_add_u32 v{vT[4]}, {OUT}, v{vO16}
    s_waitcnt lgkmcnt(0)
    s_barrier
    """)
    for i in range(6):
        a(f"ds_read_b128 {vr(vRec+4*i,4)}, v{vT[4]} offset:{8192*i}")
    for i in range(6):
        a(f"s_waitcnt lgkmcnt({5-i})")
        a(f"buffer_store_dwordx4 {vr(vRec+4*i,4)}, v{vO16}, s[{OS}:{OS+3}], s{t1} offen sc1")
        a(f"s_add_u32 s{t1}, s{t1}, 8192")
    a("s_endpgm")


def k1(cfg):
    a = Asm()
    entry(a, "k1")
    a(f"""
    s_and_b32 s{S_XCD}, s2, 7
    s_lshr_b32 s3, s2, 3
    s_cmp_lt_u32 s3, 4
    s_cbranch_scc1 k1_sort
    s_cmp_eq_u32 s3, 4
    s_cbranch_scc1 k1_prep
    """)
    nv = gemm_role(a, cfg)
    prep_role(a, cfg)
    sort_role(a, cfg)
    a.label("k1_exit")
    a("s_endpgm")
    return a, nv
```

```python
from asmlib import Asm, Alloc, vr, sr
from layout import *
from k1 import entry, srd, S_X, S_E, S_SRC, S_DST, S_W1, S_B1, S_W2, S_B2, S_OUT, S_DBG, S_WS, S_WAVE

RI, OUTOFF, DEGF, DONE, FLAG, MAP, DEGC = 0, 256, 512, 768, 800, 1024, 2304
EXP = 4096
A3L = EXP + MAXT * 1024
HB = A3L + 4096
HS = 1040
K2_LDS = HB + 48 * HS
R = 4


def k2(cfg):
    a = Asm()
    PS, QS, WSR, OS, X0, X1, X2 = 28, 32, 36, 40, 44, 48, 52
    HD = 56
    CQ, PQ = 64, 72
    s = Alloc(78, 100)
    NN, NM, STEP, ODD, SMALL, ITEM, POS, PREM, PSL, GS, GC, S128, W2O, MB = (s() for _ in range(14))
    t1, t2, t3, t4 = s(), s(), s(), s()
    SX = s(2, 2)
    L = 1
    v = Alloc(2, 256)
    vC16, vEXR, vL16, vHW, vHR, vRI, vA3B, vA3A, vINFO, vDEG, vCHK, vCOL, vB2, vONE, vQA, vTMP = (v() for _ in range(16))
    A3 = v(2)
    Y = [v(16, 4), v(16, 4)]
    T = v(24, 4)
    C = v(16, 4)
    NR = v(8); DR = v(8)
    DATA = [v(8, 4) for _ in range(R)]
    EX = [v(4, 4) for _ in range(R)]
    QD = v(8, 4)
    AS = v(8, 4)
    ACC = v(24, 4)
    W2B = v(32, 4)
    out_flags = cfg.get("k2_store", "sc1")
    use_prio = cfg.get("prio", 1)
    handlers = []

    def E_(q, i):
        a(f"v_exp_f32 v{T+i}, v{Y[q]+i}")

    def mK(q, pn):
        a(f"v_mfma_f32_32x32x8bf16_1k {vr(Y[q],16)}, {vr(A3,2)}, {vr(EX[pn]+2,2)}, {vr(C,16)}")

    def mM(q, pn, n):
        a(f"v_mfma_f32_32x32x16_bf16 {vr(Y[q],16)}, {vr(AS+4*n,4)}, {vr(DATA[pn]+4*n,4)}, {vr(Y[q],16)}")

    def mQ(n):
        c = "0" if n == 0 else vr(C, 16)
        a(f"v_mfma_f32_32x32x16_bf16 {vr(C,16)}, {vr(AS+4*n,4)}, {vr(QD+4*n,4)}, {c}")

    def chain(q, h):
        out = []
        for j in range(4):
            out.append(f"v_pk_fma_f32 {vr(NR+2*j,2)}, {vr(NR+2*j,2)}, {vr(T+8*h+2*j,2)}, {vr(NR+2*j,2)}")
        for j in range(4):
            out.append(f"v_pk_fma_f32 {vr(NR+2*j,2)}, {vr(Y[q]+8*h+2*j,2)}, {vr(DR+2*j,2)}, {vr(NR+2*j,2)}")
        for j in range(4):
            out.append(f"v_pk_fma_f32 {vr(DR+2*j,2)}, {vr(DR+2*j,2)}, {vr(T+8*h+2*j,2)}, {vr(DR+2*j,2)}")
        return out

    def exread(p, pn):
        a(f"ds_read_b128 {vr(EX[pn],4)}, v{vEXR} offset:{p*1024}")

    def gathers(pn, so=None):
        so = PSL if so is None else so
        for n in range(2):
            a(f"buffer_load_dwordx4 {vr(DATA[pn]+4*n,4)}, v{EX[pn]}, s[{PS}:{PS+3}], s{so} offen offset:{64*n}")

    def pf_setup(pnext):
        a(f"""
        s_bfe_u32 s{t1}, s{PQ}, 0x80008
        s_add_u32 s{t1}, s{t1}, 1
        s_lshr_b32 s{t1}, s{t1}, 1
        s_max_u32 s{t1}, s{t1}, 1
        s_sub_u32 s{PREM}, s{t1}, 1
        s_lshr_b32 s{t1}, s{PQ}, 28
        s_mul_i32 s{PSL}, s{t1}, {SL}
        s_and_b32 s{t1}, s{PQ}, 0xff
        s_lshl_b32 s{t1}, s{t1}, 10
        s_add_u32 s{t1}, s{t1}, {EXP - 1024*pnext}
        v_add_u32 v{vEXR}, s{t1}, v{vL16}
        """)
        for k in range(5):
            a(f"s_mov_b32 s{PQ+k}, s{PQ+k+1}")

    def advance(p, tag):
        if p == R - 1:
            a(f"v_add_u32 v{vEXR}, {R*1024}, v{vEXR}")
        a(f"s_sub_u32 s{PREM}, s{PREM}, 1\ns_cbranch_scc1 k2_pf_{tag}")
        a.label(f"k2_pfr_{tag}")
        handlers.append((tag, (p + 1) % R))

    def item_setup():
        a(f"""
        s_bfe_u32 s{t1}, s{CQ}, 0x80008
        s_and_b32 s{ODD}, s{t1}, 1
        s_cmp_eq_u32 s{t1}, 0
        s_cselect_b32 s{ODD}, 1, s{ODD}
        s_add_u32 s{t1}, s{t1}, 1
        s_lshr_b32 s{t1}, s{t1}, 1
        s_max_u32 s{t1}, s{t1}, 1
        s_cmp_lt_u32 s{t1}, {R}
        s_cselect_b32 s{SMALL}, 1, 0
        s_sub_u32 s{t1}, s{t1}, 1
        s_bfe_u32 s{t2}, s{CQ}, 0x70011
        s_min_u32 s{NN}, s{t2}, s{t1}
        s_sub_u32 s{NM}, s{t1}, s{NN}
        s_lshl_b32 s{STEP}, s{NN}, 1
        """)

    def init_nd():
        for j in range(8):
            a(f"v_mov_b32 v{NR+j}, 0")
            a(f"v_mov_b32 v{DR+j}, 1.0")

    def w2load(cnt_label):
        for j in range(2):
            if j == 1 and cnt_label:
                a(f"s_cmp_lt_u32 s{GC}, 2\ns_cbranch_scc1 {cnt_label}")
            a(f"s_lshl_b32 s{t1}, s{GS}, 12\ns_add_u32 s{t1}, s{t1}, s{W2O}")
            if j:
                a(f"s_add_u32 s{t1}, s{t1}, 4096")
            for k in range(4):
                a(f"buffer_load_dwordx4 {vr(W2B+16*j+4*k,4)}, v{vL16}, s[{WSR}:{WSR+3}], s{t1} offen offset:{1024*k}")
        if cnt_label:
            a.label(cnt_label)

    def gemm2(skip_label):
        a(f"s_lshl_b32 s{t1}, s{GS}, 7\nv_add_u32 v{vTMP}, s{t1}, v{vHR}")
        for j in range(2):
            if j == 1 and skip_label:
                a(f"s_cmp_lt_u32 s{GC}, 2\ns_cbranch_scc1 {skip_label}")
            for ks in range(2):
                for tt in range(3):
                    a(f"ds_read_b128 {vr(T+12*ks+4*tt,4)}, v{vTMP} offset:{tt*16*HS + ks*64 + j*128}")
            for ks in range(2):
                for tt in range(3):
                    a(f"s_waitcnt lgkmcnt({5 - 3*ks - tt})")
                    for U in range(2):
                        r = ACC + 8 * tt + 4 * U
                        a(f"v_mfma_f32_16x16x32_bf16 {vr(r,4)}, {vr(T+12*ks+4*tt,4)}, {vr(W2B+16*j+8*ks+4*U,4)}, {vr(r,4)}")
        if skip_label:
            a.label(skip_label)

    entry(a, "k2")
    RAW = DATA[0]
    a(f"""
    s_mul_i32 s{MB}, s2, {MEMB}
    s_add_u32 s{MB}, s{MB}, {OFF_LIST}
    v_lshrrev_b32 v{vTMP}, 2, v{L}
    v_lshlrev_b32 v{vTMP}, 2, v{vTMP}
    s_lshl_b32 s{t1}, s{S_WAVE}, 6
    v_add_u32 v{vTMP}, s{t1}, v{vTMP}
    v_lshlrev_b32 v{vL16}, 4, v{L}
    v_bfe_u32 v{vRI}, v{L}, 2, 3
    v_lshlrev_b32 v{vRI}, 2, v{vRI}
    v_lshlrev_b32 v{vA3B}, 3, v{L}
    v_lshlrev_b32 v{vQA}, 2, v{L}
    s_waitcnt lgkmcnt(0)
    s_add_u32 s{SX}, s{S_WS}, s{MB}
    s_addc_u32 s{SX+1}, s{S_WS+1}, 0
    s_load_dwordx8 s[{HD}:{HD+7}], s[{SX}:{SX+1}], 192
    """)
    srd(a, WSR, S_WS, WS_USED)
    a(f"s_add_u32 s{t1}, s{MB}, 256\ns_add_u32 s{t2}, s{MB}, {256+4096}")
    for i in range(10):
        so, off = (t1, 512 * i) if i < 8 else (t2, 512 * (i - 8))
        a(f"buffer_load_dword v{RAW+i}, v{vTMP}, s[{WSR}:{WSR+3}], s{so} offen offset:{off}")
    for t in range(5):
        a(f"""
        s_add_u32 s{t1}, s{S_WAVE}, {8*t}
        s_mul_i32 s{t2}, s{t1}, 13
        s_lshr_b32 s{t2}, s{t2}, 6
        s_mul_i32 s{t3}, s{t2}, 5
        s_sub_u32 s{t1}, s{t1}, s{t3}
        s_lshl_b32 s{t2}, s{t2}, 4
        s_or_b32 s{t1}, s{t1}, s{t2}
        s_lshl_b32 s{CQ+t}, s{t1}, 24
        """)
    HDR, I0, A3G = RAW + 10, RAW + 11, RAW + 12
    for k, dst in ((0, I0), (1, vINFO)):
        a(f"""
        s_bfe_u32 s{t1}, s{CQ+k}, 0x30018
        s_lshl_b32 s{t1}, s{t1}, 5
        s_add_u32 s{t1}, s{t1}, s{MB}
        buffer_load_dword v{dst}, v{vRI}, s[{WSR}:{WSR+3}], s{t1} offen
        """)
    a(f"""
    buffer_load_dword v{HDR}, v{vQA}, s[{WSR}:{WSR+3}], s{MB} offen
    s_lshl_b32 s{t1}, s{S_WAVE}, 9
    s_add_u32 s{t2}, s{t1}, {OFF_A3T}
    buffer_load_dwordx2 {vr(A3G,2)}, v{vA3B}, s[{WSR}:{WSR+3}], s{t2} offen
    s_lshr_b32 s{t2}, s{CQ}, 28
    s_lshl_b32 s{t2}, s{t2}, 9
    s_add_u32 s{t2}, s{t2}, {OFF_A3T}
    buffer_load_dwordx2 {vr(A3,2)}, v{vA3B}, s[{WSR}:{WSR+3}], s{t2} offen
    """)
    srd(a, X0, S_B2, 512)
    srd(a, PS, S_WS, 8 * SL)
    srd(a, QS, S_WS, 8 * SL, off=OFF_Q)
    srd(a, OS, S_OUT, N * 512)
    SEL0, SEL1, K0, K1_ = T, T + 1, T + 2, T + 3
    a(f"""
    s_lshl_b32 s{t2}, s{S_WAVE}, 6
    v_and_b32 v{vCOL}, 15, v{L}
    v_lshlrev_b32 v{vCOL}, 2, v{vCOL}
    v_add_u32 v{vCOL}, s{t2}, v{vCOL}
    buffer_load_dword v{vB2}, v{vCOL}, s[{X0}:{X0+3}], 0 offen
    s_lshl_b32 s{W2O}, s{S_WAVE}, 15
    s_add_u32 s{W2O}, s{W2O}, {OFF_W2F}
    s_movk_i32 s{S128}, 128
    v_mov_b32 v{vONE}, 1
    v_mov_b32 v{vCHK}, 0
    v_add_u32 v{vA3A}, s{t1}, v{vA3B}
    v_add_u32 v{vA3B}, {A3L}, v{vA3B}
    v_add_u32 v{vA3A}, {A3L}, v{vA3A}
    ; lane = (h, m, c)
    v_and_b32 v{K0}, 3, v{L}
    v_lshlrev_b32 v{vC16}, 4, v{K0}
    v_mul_u32_u24 v{vHW}, {HS//4}, v{vRI}
    v_add_u32 v{vHW}, v{vHW}, v{vC16}
    v_lshrrev_b32 v{K1_}, 5, v{L}
    v_lshl_add_u32 v{vHW}, v{K1_}, 3, v{vHW}
    v_add_u32 v{vHW}, {HB}, v{vHW}
    v_and_b32 v{vHR}, 15, v{L}
    v_mul_u32_u24 v{vHR}, {HS}, v{vHR}
    v_and_b32 v{SEL0}, 48, v{L}
    v_add_u32 v{vHR}, v{vHR}, v{SEL0}
    v_add_u32 v{vHR}, {HB}, v{vHR}
    v_and_b32 v{SEL0}, 1, v{L}
    v_cmp_eq_u32 vcc, 0, v{SEL0}
    v_mov_b32 v{T+4}, 0x03020c0c
    v_mov_b32 v{T+5}, 0x0c0c0302
    v_mov_b32 v{T+6}, 0x0c0c0c0c
    v_cndmask_b32 v{T+4}, v{T+4}, v{T+5}, vcc
    v_cmp_gt_u32 vcc, 2, v{K0}
    v_lshlrev_b32 v{T+7}, 4, v{SEL0}
    v_mov_b32 v{T+8}, 0x3f80
    v_cndmask_b32 v{SEL0}, v{T+6}, v{T+4}, vcc
    v_cndmask_b32 v{SEL1}, v{T+4}, v{T+6}, vcc
    v_lshlrev_b32 v{T+8}, v{T+7}, v{T+8}
    v_bfe_u32 v{T+4}, v{L}, 3, 2
    v_lshlrev_b32 v{K1_}, 1, v{K1_}
    v_sub_u32 v{T+4}, v{T+4}, v{K1_}
    v_bfe_u32 v{T+5}, v{L}, 1, 2
    v_lshl_add_u32 v{T+4}, v{T+4}, 2, v{T+5}
    """)
    for j in range(8):
        a(f"v_cmp_eq_u32 vcc, {j}, v{T+4}\ns_nop 1\nv_cndmask_b32 v{AS+j}, 0, v{T+8}, vcc")
    for j in range(24):
        a(f"v_mov_b32 v{ACC+j}, 0")
    init_nd()
    a(f"""
    v_mov_b32 v{T+4}, 0
    ds_write_b32 v{vQA}, v{T+4} offset:{DONE}
    s_waitcnt lgkmcnt(0)
    s_cmp_lg_u32 s{HD+5}, 0
    s_cbranch_scc1 k2_slow_static
    """)
    for t in range(5):
        a(f"s_bfe_u32 s{t1}, s{CQ+t}, 0x30018\ns_mov_b32 s{t2}, s{HD}")
        for g in range(1, 5):
            a(f"s_cmp_eq_u32 s{t1}, {g}\ns_cselect_b32 s{t2}, s{HD+g}, s{t2}")
        a(f"s_or_b32 s{CQ+t}, s{CQ+t}, s{t2}\ns_mov_b32 s{PQ+t}, s{CQ+t}")
    a(f"""
    s_mov_b32 s{CQ+5}, 0xf000ff00
    s_mov_b32 s{CQ+6}, 0xf000ff00
    s_mov_b32 s{PQ+5}, 0xf000ff00
    s_bfe_u32 s{t1}, s{HD+4}, 0x80008
    s_add_u32 s{t1}, s{t1}, 1
    s_lshr_b32 s{t1}, s{t1}, 1
    s_max_u32 s{t1}, s{t1}, 1
    s_and_b32 s{t2}, s{HD+4}, 0xff
    s_add_u32 s{t4}, s{t1}, s{t2}
    s_sub_u32 s{t4}, s{t4}, s{S_WAVE}
    s_lshl_b32 s{t1}, s{S_WAVE}, 10
    s_add_u32 s{t1}, s{t1}, {EXP}
    v_add_u32 v{vTMP}, s{t1}, v{vL16}
    s_lshr_b32 s{t3}, s{CQ}, 28
    s_mul_i32 s{t3}, s{t3}, {SL}
    s_waitcnt vmcnt(5)
    v_mad_u32_u16 v{T+12}, v{I0}, s{S128}, v{vC16}
    v_lshrrev_b32 v{vDEG}, 16, v{I0}
    buffer_load_dwordx4 {vr(QD,4)}, v{T+12}, s[{QS}:{QS+3}], s{t3} offen
    buffer_load_dwordx4 {vr(QD+4,4)}, v{T+12}, s[{QS}:{QS+3}], s{t3} offen offset:64
    """)
    for i in range(10):
        e = EX[i % R]
        if i == 8:
            a(f"v_add_u32 v{vTMP}, 65536, v{vTMP}")
        a(f"""
        s_cmp_le_i32 s{t4}, {8*i}
        s_cbranch_scc1 k2_expanded
        v_mad_u32_u16 v{e}, v{RAW+i}, s{S128}, v{vC16}
        v_perm_b32 v{e+2}, v{RAW+i}, v{RAW+i}, v{SEL0}
        v_perm_b32 v{e+3}, v{RAW+i}, v{RAW+i}, v{SEL1}
        ds_write_b128 v{vTMP}, {vr(e,4)} offset:{(i % 8)*8192}
        """)
    a.label("k2_expanded")
    a(f"""
    s_waitcnt vmcnt(4)
    ds_write_b32 v{vQA}, v{HDR} offset:{RI}
    v_and_b32 v{T+4}, 0xffff, v{HDR}
    v_lshlrev_b32 v{T+4}, 9, v{T+4}
    ds_write_b32 v{vQA}, v{T+4} offset:{OUTOFF}
    v_lshrrev_b32 v{T+5}, 16, v{HDR}
    v_cvt_f32_u32 v{T+5}, v{T+5}
    ds_write_b32 v{vQA}, v{T+5} offset:{DEGF}
    ds_write_b64 v{vA3A}, {vr(A3G,2)}
    """)
    item_setup()
    pf_setup(0)
    a(f"""
    s_lshr_b32 s{t1}, s{CQ+1}, 28
    s_lshl_b32 s{t1}, s{t1}, 9
    v_add_u32 v{vA3A}, s{t1}, v{vA3B}
    s_mov_b32 s{ITEM}, 0
    s_mov_b32 s{GS}, 0
    s_mov_b32 s{GC}, 0
    s_waitcnt lgkmcnt(0)
    s_barrier
    """)
    if use_prio:
        a("s_setprio 3")
    SO = [HD, HD + 1, HD + 2, HD + 3]
    for p in range(R):
        exread(p, p)
        a(f"s_mov_b32 s{SO[p]}, s{PSL}")
        advance(p, f"pro{p}")
    for p in range(R):
        a(f"s_waitcnt lgkmcnt({R-1-p})")
        gathers(p, SO[p])
    a(f"s_waitcnt vmcnt({2*R})")
    mQ(0)
    mQ(1)
    a(f"""
    v_mad_u32_u16 v{vQA}, v{vINFO}, s{S128}, v{vC16}
    s_lshr_b32 s{t3}, s{CQ+1}, 28
    s_mul_i32 s{t3}, s{t3}, {SL}
    """)
    mK(0, 0)
    a(f"s_waitcnt vmcnt({2*R-2})")
    mM(0, 0, 0)
    mM(0, 0, 1)
    exread(0, 0)
    a(f"""
    buffer_load_dwordx4 {vr(QD,4)}, v{vQA}, s[{QS}:{QS+3}], s{t3} offen
    buffer_load_dwordx4 {vr(QD+4,4)}, v{vQA}, s[{QS}:{QS+3}], s{t3} offen offset:64
    s_waitcnt lgkmcnt(0)
    """)
    gathers(0)
    a(f"v_add_u32 v{vEXR}, 1024, v{vEXR}")
    a(f"s_sub_u32 s{PREM}, s{PREM}, 1\ns_cbranch_scc1 k2_pf_pro4")
    a.label("k2_pfr_pro4")
    handlers.append(("pro4", 0))
    a("s_nop 7")

    def head(p):
        q, pn = p % 2, (p + 1) % R
        mK(q ^ 1, pn)
        for i in range(5):
            E_(q, i)
        a(f"s_waitcnt vmcnt({2*R-2})")
        mM(q ^ 1, pn, 0)
        for i in range(5, 10):
            E_(q, i)
        mM(q ^ 1, pn, 1)
        for i in range(10, 16):
            E_(q, i)

    a(".p2align 6")
    for p in range(R):
        q, pn = p % 2, (p + 1) % R
        a.label(f"k2_entry{p}")
        a(f"s_sub_u32 s{NN}, s{NN}, 1\ns_cbranch_scc1 k2_other{p}")
        head(p)
        c0, c1 = chain(q, 0), chain(q, 1)
        a(c0[0])
        exread(p, pn)
        a("\n".join(c0[1:]))
        a("\n".join(c1[:2]))
        a("s_waitcnt lgkmcnt(0)")
        gathers(pn)
        a("\n".join(c1[2:6]))
        advance(p, f"n{p}")
        a("\n".join(c1[6:]))
    a("s_branch k2_entry0")

    for p in range(R):
        q, pn = p % 2, (p + 1) % R
        a.label(f"k2_other{p}")
        a(f"s_mov_b32 s{NN}, 0\ns_sub_u32 s{NM}, s{NM}, 1\ns_cbranch_scc1 k2_last{p}")
        head(p)
        exread(p, pn)
        a(f"v_cmpx_lt_u32 vcc, s{STEP}, v{vDEG}")
        a("\n".join(chain(q, 0)))
        a(f"s_mov_b64 exec, -1\ns_add_u32 s{STEP}, s{STEP}, 1\ns_waitcnt lgkmcnt(0)")
        gathers(pn)
        advance(p, f"m{p}")
        a(f"v_cmpx_lt_u32 vcc, s{STEP}, v{vDEG}")
        a("\n".join(chain(q, 1)))
        a(f"s_mov_b64 exec, -1\ns_add_u32 s{STEP}, s{STEP}, 1\ns_branch k2_entry{pn}")

        a.label(f"k2_last{p}")
        a(f"""
        ds_read_b64 {vr(A3,2)}, v{vA3A}
        s_cmp_eq_u32 s{SMALL}, 0
        s_cbranch_scc1 k2_lastw{p}
        s_waitcnt vmcnt(0)
        """)
        a.label(f"k2_lastw{p}")
        a(f"s_waitcnt vmcnt({2*R-2})")
        mQ(0)
        for i in range(4):
            E_(q, i)
        mQ(1)
        for i in range(4, 8):
            E_(q, i)
        a(f"s_mov_b32 s{POS}, {pn}\ns_cmp_lg_u32 s{ODD}, 0\ns_cbranch_scc1 k2_lastodd{p}")
        a("s_waitcnt lgkmcnt(0)")
        mK(q ^ 1, pn)
        for i in range(8, 16):
            E_(q, i)
        exread(p, pn)
        a(f"v_cmpx_lt_u32 vcc, s{STEP}, v{vDEG}")
        a("\n".join(chain(q, 0)))
        a(f"s_add_u32 s{STEP}, s{STEP}, 1\nv_cmpx_lt_u32 vcc, s{STEP}, v{vDEG}")
        a("\n".join(chain(q, 1)))
        a("s_mov_b64 exec, -1")
        mM(q ^ 1, pn, 0)
        for i in range(4):
            a(f"v_rcp_f32 v{T+i}, v{DR+i}")
        mM(q ^ 1, pn, 1)
        for i in range(4, 8):
            a(f"v_rcp_f32 v{T+i}, v{DR+i}")
        a("s_waitcnt lgkmcnt(0)")
        gathers(pn)
        advance(p, f"l{p}")
        a("s_branch k2_boundary")
        a.label(f"k2_lastodd{p}")
        a(f"v_cmpx_lt_u32 vcc, s{STEP}, v{vDEG}")
        a("\n".join(chain(q, 0)))
        a("s_mov_b64 exec, -1\ns_waitcnt lgkmcnt(0)")
        mK(q ^ 1, pn)
        for i in range(4):
            a(f"v_rcp_f32 v{T+i}, v{DR+i}")
        exread(p, pn)
        mM(q ^ 1, pn, 0)
        for i in range(4, 8):
            a(f"v_rcp_f32 v{T+i}, v{DR+i}")
        mM(q ^ 1, pn, 1)
        a("s_waitcnt lgkmcnt(0)")
        gathers(pn)
        advance(p, f"o{p}")
        a("s_branch k2_boundary")

    a.label("k2_boundary")
    a(f"""
    s_bfe_u32 s{t1}, s{CQ+2}, 0x30018
    s_lshl_b32 s{t1}, s{t1}, 5
    v_lshrrev_b32 v{vDEG}, 16, v{vINFO}
    v_add_u32 v{vTMP}, s{t1}, v{vRI}
    ds_read_b32 v{vINFO}, v{vTMP} offset:{RI}
    """)
    for j in range(8):
        a(f"v_maximum3_f32 v{vCHK}, v{vCHK}, v{DR+j}, abs(v{NR+j})")
    a(f"""
    s_bfe_u32 s{t1}, s{CQ}, 0x30018
    s_mul_i32 s{t1}, s{t1}, {8*HS}
    s_lshr_b32 s{t2}, s{CQ}, 28
    s_lshl_b32 s{t2}, s{t2}, 7
    s_add_u32 s{t1}, s{t1}, s{t2}
    v_add_u32 v{vTMP}, s{t1}, v{vHW}
    """)
    for j in range(4):
        a(f"v_pk_mul_f32 {vr(NR+2*j,2)}, {vr(NR+2*j,2)}, {vr(T+2*j,2)}")
    for j in range(4):
        a(f"v_cvt_pk_bf16_f32 v{T+8+j}, v{NR+2*j}, v{NR+2*j+1}")
    a(f"""
    ds_write_b64 v{vTMP}, {vr(T+8,2)}
    ds_write_b64 v{vTMP}, {vr(T+10,2)} offset:64
    s_lshl_b32 s{t1}, s{ITEM}, 2
    v_mov_b32 v{vTMP}, s{t1}
    s_mov_b64 exec, 1
    ds_add_u32 v{vTMP}, v{vONE} offset:{DONE}
    s_mov_b64 exec, -1
    """)
    init_nd()
    for k in range(6):
        a(f"s_mov_b32 s{CQ+k}, s{CQ+k+1}")
    item_setup()
    a(f"""
    s_lshr_b32 s{t3}, s{CQ+1}, 28
    s_lshl_b32 s{t1}, s{t3}, 9
    v_add_u32 v{vA3A}, s{t1}, v{vA3B}
    s_mul_i32 s{t3}, s{t3}, {SL}
    s_cmp_eq_u32 s{GC}, 0
    s_cbranch_scc1 k2_nog2
    s_mov_b32 s{t2}, 0
    """)
    a.label("k2_wait_round")
    a(f"""
    ds_read_b32 v{vQA}, v{vTMP} offset:{DONE-4}
    s_waitcnt lgkmcnt(0)
    v_readfirstlane_b32 s{t1}, v{vQA}
    s_cmp_ge_u32 s{t1}, 8
    s_cbranch_scc1 k2_round_ok
    s_sleep 2
    s_add_u32 s{t2}, s{t2}, 1
    s_cmp_lt_u32 s{t2}, 0x100000
    s_cbranch_scc1 k2_wait_round
    """)
    a.label("k2_round_ok")
    gemm2("k2_nog2")
    a(f"""
    s_add_u32 s{GS}, s{GS}, s{GC}
    s_lshr_b32 s{GC}, 26, s{ITEM}
    s_and_b32 s{GC}, s{GC}, 1
    s_add_u32 s{GC}, s{GC}, 1
    """)
    w2load("k2_w2_done")
    a(f"""
    s_waitcnt lgkmcnt(0)
    v_mad_u32_u16 v{vQA}, v{vINFO}, s{S128}, v{vC16}
    s_add_u32 s{ITEM}, s{ITEM}, 1
    s_cmp_eq_u32 s{ITEM}, 5
    s_cbranch_scc1 k2_tail
    buffer_load_dwordx4 {vr(QD,4)}, v{vQA}, s[{QS}:{QS+3}], s{t3} offen
    buffer_load_dwordx4 {vr(QD+4,4)}, v{vQA}, s[{QS}:{QS+3}], s{t3} offen offset:64
    """)
    if use_prio:
        a(f"""
        s_setprio 0
        s_cmp_ge_u32 s{ITEM}, 3
        s_cbranch_scc1 k2_prio_set
        s_setprio 1
        s_cmp_eq_u32 s{ITEM}, 2
        s_cbranch_scc1 k2_prio_set
        s_setprio 2
        """)
        a.label("k2_prio_set")
    for p in range(1, R):
        a(f"s_cmp_eq_u32 s{POS}, {p}\ns_cbranch_scc1 k2_entry{p}")
    a("s_branch k2_entry0")

    for tag, pnext in handlers:
        a.label(f"k2_pf_{tag}")
        pf_setup(pnext)
        a(f"s_branch k2_pfr_{tag}")

    a.label("k2_tail")
    a(f"""
    v_cmp_ngt_f32 vcc, 0x7b800000, v{vCHK}
    v_mov_b32 v{vTMP}, {FLAG}
    s_cbranch_vccz k2_tail_ok
    ds_write_b32 v{vTMP}, v{vONE}
    """)
    a.label("k2_tail_ok")
    a(f"""
    s_waitcnt lgkmcnt(0)
    s_barrier
    ds_read_b32 v{vQA}, v{vTMP}
    s_waitcnt lgkmcnt(0)
    v_readfirstlane_b32 s{t1}, v{vQA}
    s_cmp_lg_u32 s{t1}, 0
    s_cbranch_scc1 k2_slow
    """)
    a.label("k2_final")
    a("s_waitcnt vmcnt(0)")
    gemm2(None)
    a(f"""
    s_add_u32 s{GS}, s{GS}, 2
    s_cmp_ge_u32 s{GS}, 8
    s_cbranch_scc1 k2_out
    """)
    w2load(None)
    a("s_branch k2_final")
    a.label("k2_out")
    OO, DG = Y[0], Y[1]
    a(f"v_and_b32 v{vTMP}, 48, v{L}")
    for tt in range(3):
        a(f"ds_read_b128 {vr(OO+4*tt,4)}, v{vTMP} offset:{OUTOFF + 64*tt}")
        a(f"ds_read_b128 {vr(DG+4*tt,4)}, v{vTMP} offset:{DEGF + 64*tt}")
    a(f"""
    v_lshlrev_b32 v{T}, 16, v{vB2}
    v_and_b32 v{T+1}, 0xffff0000, v{vB2}
    s_mov_b32 s{t1}, {C_NLN2}
    s_waitcnt lgkmcnt(0)
    s_nop 3
    """)
    for tt in range(3):
        for r in range(4):
            k = 4 * tt + r
            x0, x1 = ACC + 8 * tt + r, ACC + 8 * tt + 4 + r
            a(f"""
            v_mul_f32 v{T+2}, v{DG+k}, v{T}
            v_mul_f32 v{T+3}, v{DG+k}, v{T+1}
            v_fma_f32 v{x0}, v{x0}, s{t1}, v{T+2}
            v_fma_f32 v{x1}, v{x1}, s{t1}, v{T+3}
            v_add_u32 v{OO+k}, v{OO+k}, v{vCOL}
            v_cvt_pk_bf16_f32 v{x0}, v{x0}, v{x1}
            buffer_store_dword v{x0}, v{OO+k}, s[{OS}:{OS+3}], 0 offen {out_flags}
            """)
    a("s_endpgm")

    POOL0, BASE = HD, HD + 1
    vL4, vPO, vD, vS_, vE, vRow, vAA = (Y[0] + i for i in range(7))
    WV = Y[1]
    PD, QV, YY = DATA[0], DATA[0] + 4, DATA[1]
    a.label("k2_slow_static")
    a(f"""
    s_waitcnt vmcnt(0)
    s_lshr_b32 s{t1}, s2, 3
    s_mul_i32 s{t1}, s{t1}, 313
    s_and_b32 s{t2}, s2, 7
    s_mul_i32 s{t2}, s{t2}, 40
    s_add_u32 s{t3}, s{t1}, 313
    s_min_u32 s{t3}, s{t3}, {N}
    s_add_u32 s{t1}, s{t1}, s{t2}
    s_add_u32 s{t2}, s{t1}, 40
    s_min_u32 s{t3}, s{t3}, s{t2}
    v_add_u32 v{T}, s{t1}, v{L}
    v_cmp_gt_u32 vcc, s{t3}, v{T}
    v_mov_b32 v{T+1}, {N}
    v_lshlrev_b32 v{T+2}, 2, v{L}
    v_cndmask_b32 v{T}, v{T+1}, v{T}, vcc
    v_lshlrev_b32 v{T}, 9, v{T}
    ds_write_b32 v{T+2}, v{T} offset:{OUTOFF}
    """)
    a.label("k2_slow")
    a(f"""
    s_waitcnt vmcnt(0) lgkmcnt(0)
    s_barrier
    s_lshr_b32 s{POOL0}, s2, 3
    s_mul_i32 s{POOL0}, s{POOL0}, 313
    v_lshlrev_b32 v{vL4}, 2, v{L}
    v_lshlrev_b32 v{T}, 2, v0
    v_lshlrev_b32 v{T+1}, 4, v0
    v_mov_b32 v{T+2}, -1
    v_mov_b32 v{T+4}, 0
    v_mov_b32 v{T+5}, 0
    v_mov_b32 v{T+6}, 0
    v_mov_b32 v{T+7}, 0
    v_cmp_gt_u32 vcc, 320, v0
    s_nop 1
    v_cndmask_b32 v{T+2}, 0, v{T+2}, vcc
    ds_write_b32 v{T}, v{T+2} offset:{MAP}
    v_add_u32 v{T+1}, {EXP}, v{T+1}
    """)
    for i in range(10):
        if i == 8:
            a(f"v_add_u32 v{T+1}, 65536, v{T+1}")
        a(f"ds_write_b128 v{T+1}, {vr(T+4,4)} offset:{(i % 8)*8192}")
    srd(a, X0, S_W1, 513 * 1024)
    a(f"""
    v_lshrrev_b32 v{T}, 3, v{L}
    v_and_b32 v{T+2}, 7, v{L}
    s_mov_b32 s{t1}, {SL}
    v_mul_lo_u32 v{vPO}, v{T}, s{t1}
    v_lshl_add_u32 v{vPO}, v{T+2}, 4, v{vPO}
    v_lshlrev_b32 v{T}, 7, v{T}
    v_lshl_add_u32 v{T}, v{T+2}, 3, v{T}
    s_mov_b32 s{t1}, {512*1024}
    """)
    for j in range(8):
        a(f"buffer_load_ushort v{WV+j}, v{T}, s[{X0}:{X0+3}], s{t1} offen offset:{(32*(j & 1) + (j >> 1))*2}")
    a(f"""
    s_waitcnt lgkmcnt(0)
    s_barrier
    ds_read_b32 v{T}, v{vL4} offset:{OUTOFF}
    s_waitcnt lgkmcnt(0)
    v_lshrrev_b32 v{T}, 9, v{T}
    v_cmp_gt_u32 vcc, {N}, v{T}
    v_cmp_gt_u32 s[{SX}:{SX+1}], 40, v{L}
    v_subrev_u32 v{T}, s{POOL0}, v{T}
    v_lshlrev_b32 v{T}, 2, v{T}
    s_and_b64 exec, vcc, s[{SX}:{SX+1}]
    ds_write_b32 v{T}, v{L} offset:{MAP}
    s_mov_b64 exec, -1
    s_mov_b32 s{t1}, {C_NLOG2E}
    s_waitcnt vmcnt(0)
    """)
    for j in range(8):
        a(f"v_lshlrev_b32 v{WV+j}, 16, v{WV+j}\nv_mul_f32 v{WV+j}, s{t1}, v{WV+j}")
    srd(a, X0, S_DST, E * 4)
    srd(a, X1, S_SRC, E * 4)
    srd(a, X2, S_E, E * 2)
    a(f"""
    s_lshl_b32 s{BASE}, s{S_WAVE}, 6
    v_lshlrev_b32 v{T+1}, 1, v{L}
    s_waitcnt lgkmcnt(0)
    s_barrier
    """)
    a.label("k2_slow_scan")
    a(f"""
    s_lshl_b32 s{t1}, s{BASE}, 2
    s_lshl_b32 s{t2}, s{BASE}, 1
    buffer_load_dword v{vD}, v{vL4}, s[{X0}:{X0+3}], s{t1} offen
    buffer_load_dword v{vS_}, v{vL4}, s[{X1}:{X1+3}], s{t1} offen
    buffer_load_ushort v{vE}, v{T+1}, s[{X2}:{X2+3}], s{t2} offen
    s_waitcnt vmcnt(0)
    v_subrev_u32 v{vRow}, s{POOL0}, v{vD}
    v_min_u32 v{vRow}, 319, v{vRow}
    v_lshlrev_b32 v{vRow}, 2, v{vRow}
    ds_read_b32 v{vRow}, v{vRow} offset:{MAP}
    v_lshlrev_b32 v{vE}, 16, v{vE}
    s_waitcnt lgkmcnt(0)
    v_cmp_le_i32 s[{SX}:{SX+1}], 0, v{vRow}
    s_nop 3
    """)
    a.label("k2_slow_edge")
    a(f"""
    s_cmp_eq_u64 s[{SX}:{SX+1}], 0
    s_cbranch_scc1 k2_slow_next
    s_ff1_i32_b64 s{t1}, s[{SX}:{SX+1}]
    s_bitset0_b64 s[{SX}:{SX+1}], s{t1}
    v_readlane_b32 s{t2}, v{vS_}, s{t1}
    v_readlane_b32 s{t3}, v{vD}, s{t1}
    v_readlane_b32 s{t4}, v{vE}, s{t1}
    v_readlane_b32 s{t1}, v{vRow}, s{t1}
    s_lshl_b32 s{t2}, s{t2}, 7
    s_lshl_b32 s{t3}, s{t3}, 7
    s_nop 3
    buffer_load_dwordx4 {vr(PD,4)}, v{vPO}, s[{PS}:{PS+3}], s{t2} offen
    buffer_load_dwordx4 {vr(QV,4)}, v{vPO}, s[{QS}:{QS+3}], s{t3} offen
    s_lshl_b32 s{t2}, s{t1}, 11
    s_add_u32 s{t2}, s{t2}, {EXP}
    v_add_u32 v{vAA}, s{t2}, v{vL4}
    s_lshl_b32 s{t1}, s{t1}, 2
    v_mov_b32 v{T+2}, s{t1}
    s_mov_b64 exec, 1
    ds_add_u32 v{T+2}, v{vONE} offset:{DEGC}
    s_mov_b64 exec, -1
    s_waitcnt vmcnt(0)
    """)
    for j in range(8):
        if j % 2 == 0:
            a(f"v_lshlrev_b32 v{T+4}, 16, v{PD+j//2}\nv_lshlrev_b32 v{T+5}, 16, v{QV+j//2}")
        else:
            a(f"v_and_b32 v{T+4}, 0xffff0000, v{PD+j//2}\nv_and_b32 v{T+5}, 0xffff0000, v{QV+j//2}")
        a(f"""
        v_fma_f32 v{T+5}, s{t4}, v{WV+j}, v{T+5}
        v_add_f32 v{T+4}, v{T+4}, v{T+5}
        v_exp_f32 v{T+5}, v{T+4}
        s_nop 0
        v_add_f32 v{T+5}, 1.0, v{T+5}
        v_rcp_f32 v{T+5}, v{T+5}
        s_nop 0
        v_mul_f32 v{YY+j}, v{T+4}, v{T+5}
        ds_add_f32 v{vAA}, v{YY+j} offset:{256*j}
        """)
    a("s_branch k2_slow_edge")
    a.label("k2_slow_next")
    a(f"""
    s_add_u32 s{BASE}, s{BASE}, 512
    s_cmp_lt_u32 s{BASE}, {E}
    s_cbranch_scc1 k2_slow_scan
    s_waitcnt lgkmcnt(0)
    s_barrier
    ds_read_b32 v{T}, v{vL4} offset:{DEGC}
    s_waitcnt lgkmcnt(0)
    v_cvt_f32_u32 v{T}, v{T}
    ds_write_b32 v{vL4}, v{T} offset:{DEGF}
    """)
    for i in range(5):
        a(f"""
        s_add_u32 s{t1}, s{S_WAVE}, {8*i}
        s_lshl_b32 s{t2}, s{t1}, 11
        s_add_u32 s{t2}, s{t2}, {EXP}
        v_add_u32 v{vAA}, s{t2}, v{vL4}
        s_mul_i32 s{t1}, s{t1}, {HS}
        s_add_u32 s{t1}, s{t1}, {HB}
        v_add_u32 v{T+2}, s{t1}, v{vL16}
        """)
        for j in range(8):
            a(f"ds_read_b32 v{YY+j}, v{vAA} offset:{256*j}")
        a("s_waitcnt lgkmcnt(0)")
        for j in range(4):
            a(f"v_cvt_pk_bf16_f32 v{T+4+j}, v{YY+2*j}, v{YY+2*j+1}")
        a(f"ds_write_b128 v{T+2}, {vr(T+4,4)}")
    for j in range(24):
        a(f"v_mov_b32 v{ACC+j}, 0")
    a(f"s_mov_b32 s{GS}, 0")
    w2load(None)
    a("s_waitcnt lgkmcnt(0)\ns_barrier\ns_branch k2_final")
    a.label("k2_exit")
    a("s_endpgm")
    return a, v.n
```

```python
N = 10000
E = 160000
SL = 10240 * 128
OFF_P = 0
OFF_Q = 8 * SL
OFF_W2F = 16 * SL
OFF_A3T = OFF_W2F + 262144
OFF_SEG = OFF_A3T + 4096
MEMB = 6144
MAXT = 80
OFF_LIST = OFF_SEG + 32 * 57344
WS_USED = OFF_LIST + 256 * MEMB
C_NLOG2E = "0xbfb8aa3b"
C_NLN2 = "0xbf317218"
```

```python
import sys, os
sys.path.insert(0, os.path.dirname(os.path.abspath(__file__)))
from asmlib import verify
from k1 import k1

HEADER = open(os.path.join(os.path.dirname(os.path.abspath(__file__)), "header.txt")).read()

def descriptor(name, nv, ns=102):
    nv8 = (nv + 7) // 8 * 8
    return f""".amdhsa_kernel {name}
  .amdhsa_next_free_vgpr {nv8}
  .amdhsa_next_free_sgpr {ns}
  .amdhsa_accum_offset {nv8}
  .amdhsa_group_segment_fixed_size 0
  .amdhsa_kernarg_size 88
  .amdhsa_user_sgpr_count 2
  .amdhsa_user_sgpr_kernarg_segment_ptr 1
  .amdhsa_system_sgpr_workgroup_id_x 1
  .amdhsa_float_denorm_mode_32 3
.end_amdhsa_kernel
"""

def build(cfg):
    parts = [("mpnn_prep_kernel", *k1(cfg), 163840)]
    if cfg.get("k2", True):
        from k2 import k2, K2_LDS
        parts.append(("mpnn_edge_kernel", *k2(cfg), K2_LDS))
    s = HEADER
    for name, a, nv, lds in parts:
        s += f"; @launch kernel={name} grid=(256,1,1) block=(512,1,1) lds={lds}\n"
    s += '.amdgcn_target "amdgcn-amd-amdhsa--gfx950"\n.text\n'
    for name, a, nv, lds in parts:
        body = a.text()
        bad = verify(body)
        for b in bad:
            print("HAZARD", name, b, file=sys.stderr)
        assert not bad
        s += f".globl {name}\n.p2align 8\n.type {name},@function\n{name}:\n" + body
    s += '.section .rodata,"a"\n'
    for name, a, nv, lds in parts:
        s += ".p2align 6\n" + descriptor(name, nv)
    return s

if __name__ == "__main__":
    cfg = {}
    out = "standalone__edge_featured_mpnn_mpnn__graph.s"
    for arg in sys.argv[1:]:
        k, val = arg.split("=", 1)
        if k == "out":
            out = val
        else:
            try: val = int(val)
            except ValueError: pass
            cfg[k] = val
    open(out, "w").write(build(cfg))
    print("wrote", out)
```

```python
import re


class Asm:
    def __init__(self):
        self.lines = []

    def __call__(self, text):
        for ln in text.split("\n"):
            ln = ln.rstrip()
            if ln.strip():
                self.lines.append(ln if ln.strip().endswith(":") or ln.startswith(".") or ln.startswith(";") else "  " + ln.strip())

    def label(self, name):
        self.lines.append(name + ":")

    def text(self):
        return "\n".join(self.lines) + "\n"


def vr(a, n=1):
    return f"v{a}" if n == 1 else f"v[{a}:{a + n - 1}]"


def sr(a, n=1):
    return f"s{a}" if n == 1 else f"s[{a}:{a + n - 1}]"


class Alloc:
    def __init__(self, start, limit):
        self.n = start
        self.limit = limit

    def __call__(self, n=1, align=None):
        if align is None:
            align = 1 if n == 1 else 2
        self.n = (self.n + align - 1) // align * align
        a = self.n
        self.n += n
        assert self.n <= self.limit, f"out of registers: {self.n} > {self.limit}"
        return a


_REG = re.compile(r"(?<![\w.])([vsa])(?:(\d+)|\[(\d+):(\d+)\])")
TRANS = ("v_exp_", "v_log_", "v_rcp_", "v_rsq_", "v_sqrt_", "v_sin_", "v_cos_")


def regs_of(tok):
    out = set()
    for m in _REG.finditer(tok):
        k = m.group(1)
        if m.group(2) is not None:
            out.add((k, int(m.group(2))))
        else:
            for i in range(int(m.group(3)), int(m.group(4)) + 1):
                out.add((k, i))
    t = tok.strip()
    if re.search(r"\bvcc\b", t):
        out.add(("s", "vcc"))
    if re.search(r"\bexec\b", t):
        out.add(("s", "exec"))
    if re.search(r"\bm0\b", t):
        out.add(("s", "m0"))
    return out


def split_ops(s):
    ops, depth, cur = [], 0, ""
    for ch in s:
        if ch == "[":
            depth += 1
        if ch == "]":
            depth -= 1
        if ch == "," and depth == 0:
            ops.append(cur.strip())
            cur = ""
        else:
            cur += ch
    if cur.strip():
        ops.append(cur.strip())
    return ops


class Ins:
    def __init__(self, text, lineno):
        self.text = text
        self.lineno = lineno
        t = text.split(";")[0].strip()
        p = t.split(None, 1)
        self.mn = p[0]
        self.ops = split_ops(p[1]) if len(p) > 1 else []
        mn = self.mn
        self.valu = mn.startswith("v_")
        self.mfma = mn.startswith("v_mfma") or mn.startswith("v_smfmac")
        self.trans = mn.startswith(TRANS)
        self.salu = mn.startswith("s_")
        self.vmem = mn.startswith("buffer_") or mn.startswith("global_")
        self.ds = mn.startswith("ds_")
        self.dpp = "_dpp" in mn or any("row_" in o or "quad_perm" in o for o in self.ops)
        self.ldsdma = self.vmem and re.search(r"\blds\b", t) is not None
        d, s = set(), set()
        ops = self.ops
        self.srcc = set()
        self.srcab = set()
        self.data = set()
        if self.mfma:
            d = regs_of(ops[0])
            self.srcab = regs_of(ops[1]) | regs_of(ops[2])
            self.srcc = regs_of(ops[3]) if mn.startswith("v_mfma") else set(d)
            s = self.srcab | self.srcc | regs_of(ops[3])
            self.passes = 8 if "32x32" in mn else 4
        elif mn.startswith("v_cmpx"):
            d = regs_of(ops[0]) | {("s", "exec")}
            for o in ops[1:]:
                s |= regs_of(o)
        elif mn.startswith("v_permlane") and "swap" in mn:
            d = regs_of(ops[0]) | regs_of(ops[1])
            s = set(d)
        elif self.valu:
            d = regs_of(ops[0])
            k = 1
            if re.match(r"v_(add|sub|subrev|addc|subb)_co_", mn):
                d |= regs_of(ops[1])
                k = 2
            for o in ops[k:]:
                s |= regs_of(o)
            if mn.startswith(("v_fmac", "v_writelane")) or self.dpp:
                s |= regs_of(ops[0])
        elif self.vmem:
            if mn in ("buffer_inv", "buffer_wbl2"):
                pass
            elif self.ldsdma:
                for o in ops:
                    s |= regs_of(o)
                s.add(("s", "m0"))
            elif "_load" in mn:
                d = regs_of(ops[0])
                for o in ops[1:]:
                    s |= regs_of(o)
            else:
                for o in ops:
                    s |= regs_of(o)
                self.data = regs_of(ops[0])
                if "atomic" in mn and re.search(r"\bsc0\b", t):
                    d = regs_of(ops[0])
        elif self.ds:
            if "read" in mn or "rtn" in mn or "permute" in mn or "swizzle" in mn:
                d = regs_of(ops[0])
                for o in ops[1:]:
                    s |= regs_of(o)
            else:
                for o in ops:
                    s |= regs_of(o)
            if "addtid" in mn:
                s.add(("s", "m0"))
        elif self.salu:
            nodst = ("s_cmp", "s_waitcnt", "s_barrier", "s_nop", "s_branch", "s_cbranch", "s_endpgm",
                     "s_setprio", "s_sleep", "s_bitcmp", "s_setpc")
            if mn.startswith(nodst):
                for o in ops:
                    s |= regs_of(o)
            else:
                d = regs_of(ops[0])
                for o in ops[1:]:
                    s |= regs_of(o)
                if "saveexec" in mn:
                    d.add(("s", "exec"))
        self.d, self.s = d, s
        self.states = 1
        if mn == "s_nop":
            self.states = int(ops[0], 0) + 1


def need(a, b):
    n = 0
    vd = {r for r in a.d if r[0] in "va"}
    sd = {r for r in a.d if r[0] == "s"}
    if a.mfma:
        p = a.passes
        if b.mfma:
            if vd & b.srcab:
                n = max(n, {4: 8, 8: 12}[p])
            if vd & b.srcc:
                exact = vd == b.srcc and a.passes == b.passes
                n = max(n, 0 if exact else {4: 6, 8: 10}[p])
            if (vd & b.d) and not (vd & b.srcc) and a.passes != b.passes:
                n = max(n, {4: 6, 8: 10}[p])
        elif (b.valu or b.vmem or b.ds) and (vd & (b.s | b.d)):
            n = max(n, {4: 8, 8: 12}[p])
        if b.valu and not b.mfma and (a.srcc & b.d):
            n = max(n, {4: 3, 8: 7}[p])
    elif a.valu:
        if b.mfma and (vd & b.s):
            n = max(n, 2)
        if b.mfma and ("s", "exec") in sd:
            n = max(n, 4)
        if b.valu and b.dpp and (vd & b.s):
            n = max(n, 2)
        if b.valu and b.dpp and ("s", "exec") in sd:
            n = max(n, 5)
        if b.mn.startswith("v_permlane") and (vd & b.s):
            n = max(n, 2)
        if b.mn.startswith(("v_readlane", "v_readfirstlane")) and (vd & b.s):
            n = max(n, 1)
        if b.mn.startswith(("v_readlane", "v_readfirstlane", "v_writelane", "v_permlane")) and ("s", "exec") in sd:
            n = max(n, 4)
        sx = sd - {("s", "exec")}
        if b.vmem and (sx & b.s):
            n = max(n, 5)
        if b.valu and (sx & b.s):
            n = max(n, 4 if b.mn.startswith(("v_readlane", "v_writelane")) else 2)
        if b.valu and ("s", "exec") in sd and ("s", "exec") in b.s:
            n = max(n, 2)
        if a.trans and b.valu and not b.trans and (vd & b.s):
            n = max(n, 1)
        if ("sdwa" in a.mn or any("op_sel:" in o for o in a.ops) and not a.mn.startswith("v_pk_")) and b.valu and (vd & (b.s | b.d)):
            n = max(n, 1)
    elif a.salu:
        if ("s", "m0") in sd and ("s", "m0") in b.s and (b.ldsdma or b.ds):
            n = max(n, 1)
        if ("s", "m0") in sd and b.mn.startswith("s_movrel"):
            n = max(n, 1)
    elif a.vmem and a.data and re.search(r"dwordx[34]", a.mn):
        if a.data & b.d:
            n = max(n, 2 if b.valu else 1)
    return n


def verify(text, maxdist=14):
    ins, labels, jumps = [], {}, {}
    for no, ln in enumerate(text.split("\n"), 1):
        t = ln.split(";")[0].strip()
        if not t:
            continue
        if ";->" in ln:
            jumps[len(ins)] = ln.split(";->")[1].strip().split(",")
        if t.endswith(":"):
            labels[t[:-1]] = len(ins)
            continue
        if t.startswith("."):
            continue
        ins.append(Ins(t, no))
    bad = []

    def succ(i):
        x = ins[i]
        if x.mn == "s_endpgm":
            return []
        if x.mn.startswith("s_setpc"):
            return [labels[k] for k in jumps[i]]
        if x.mn == "s_branch":
            return [labels[x.ops[0]]]
        if x.mn.startswith("s_cbranch"):
            return [labels[x.ops[0]], i + 1]
        return [i + 1]

    for i, a in enumerate(ins):
        if not (a.valu or a.salu or a.vmem):
            continue
        seen = {}
        stack = [(j, 0) for j in succ(i)]
        while stack:
            j, dist = stack.pop()
            if j >= len(ins) or dist >= maxdist:
                continue
            if seen.get(j, 99) <= dist:
                continue
            seen[j] = dist
            b = ins[j]
            n = need(a, b)
            if n > dist:
                bad.append((a.lineno, a.text, b.lineno, b.text, n, dist))
            for k in succ(j):
                stack.append((k, dist + b.states))
    return bad
```

```python
from asmlib import Asm, Alloc, vr, sr
from layout import *

S_X, S_E, S_SRC, S_DST, S_W1, S_B1, S_W2, S_B2, S_OUT, S_DBG, S_WS = 4, 6, 8, 10, 12, 14, 16, 18, 20, 22, 24
S_WAVE = 26
S_XCD = 27


def srd(a, d, base, nbytes, off=None):
    if off is None:
        a(f"s_mov_b32 s{d}, s{base}")
        a(f"s_mov_b32 s{d+1}, s{base+1}")
    else:
        a(f"s_add_u32 s{d}, s{base}, {off}")
        a(f"s_addc_u32 s{d+1}, s{base+1}, 0")
    a(f"s_mov_b32 s{d+2}, {nbytes}")
    a(f"s_mov_b32 s{d+3}, 0x00020000")


class Prof:
    def __init__(self, a, cfg, kernel, vreg):
        self.a, self.on, self.kernel, self.v = a, cfg.get("prof", 0), kernel, vreg

    def start(self):
        if self.on:
            self.a(f"s_memrealtime s[100:101]\nv_mov_b32 v{self.v}, 0\ns_waitcnt lgkmcnt(0)\nv_writelane_b32 v{self.v}, s100, 0")
            self.a(f"s_memtime s[100:101]\ns_waitcnt lgkmcnt(0)\nv_writelane_b32 v{self.v}, s100, 62")

    def stamp(self, k):
        if self.on:
            self.a(f"s_memrealtime s[100:101]\ns_waitcnt lgkmcnt(0)\nv_writelane_b32 v{self.v}, s100, {k}")
        if self.on == 4:
            self.a(f"s_memtime s[100:101]\ns_waitcnt lgkmcnt(0)\nv_writelane_b32 v{self.v}, s100, {32 + k}")

    def stamp_at(self, sreg, base):
        if self.on > 1:
            self.a(f"{'s_memtime' if self.on == 3 else 's_memrealtime'} s[100:101]\ns_waitcnt lgkmcnt(0)\ns_add_u32 s101, s{sreg}, {base}\ns_mov_b32 m0, s101\nv_writelane_b32 v{self.v}, s100, m0")

    def role(self, r):
        if self.on:
            self.a(f"s_getreg_b32 s100, hwreg(HW_REG_XCC_ID, 0, 4)\ns_sub_u32 s100, s100, s2\ns_and_b32 s100, s100, 7\ns_mul_i32 s100, s100, 50\ns_add_u32 s100, s100, 1000\nv_writelane_b32 v{self.v}, s100, 58")
            self.a(f"s_mov_b32 s100, {r}\nv_writelane_b32 v{self.v}, s100, 60")

    def cyc(self, k):
        self.a(f"{'s_memtime' if self.on == 3 else 's_memrealtime'} s[100:101]\ns_waitcnt lgkmcnt(0)\nv_writelane_b32 v{self.v}, s100, {k}")

    def finish(self, k):
        if self.on:
            self.a("s_waitcnt vmcnt(0)")
            self.stamp(k)
            self.a(f"s_memtime s[100:101]\ns_waitcnt lgkmcnt(0)\nv_writelane_b32 v{self.v}, s100, 63")
            self.a(f"""
            s_mov_b64 exec, -1
            s_mov_b32 s96, s{S_WS}
            s_mov_b32 s97, s{S_WS+1}
            s_mov_b32 s98, {OFF_PROF + (2 << 20)}
            s_mov_b32 s99, 0x00020000
            s_lshl_b32 s100, s2, 11
            s_add_u32 s100, s100, {OFF_PROF + self.kernel * (1 << 19)}
            v_lshlrev_b32 v0, 2, v0
            buffer_store_dword v{self.v}, v0, s[96:99], s100 offen
            """)


def entry(a, tag, prof):
    a(f"""
    s_cmp_ge_u32 s2, 256
    s_cbranch_scc1 {tag}_exit
    """)
    prof.start()
    a(f"""
    s_load_dwordx16 s[4:19], s[0:1], 0
    s_load_dwordx4 s[20:23], s[0:1], 64
    s_load_dwordx2 s[24:25], s[0:1], 80
    v_readfirstlane_b32 s{S_WAVE}, v0
    v_and_b32 v1, 63, v0
    s_lshr_b32 s{S_WAVE}, s{S_WAVE}, 6
    """)


def gemm_role(a, cfg, pr):
    XS, WS_, OS, BS = 28, 32, 36, 40
    T0, NT, CB, CG, RG, WOFF, SC, M0B, XO = 44, 45, 46, 47, 48, 49, 50, 52, 53
    t1, t2 = 54, 55
    TB = [56, 57, 58]
    SO = [59, 60, 61]
    MW, X0, t3 = 62, 63, 64
    st_flags = cfg.get("k1_store", "sc1").replace("_", " ").replace("plain", "")
    v = Alloc(2, 256)
    vW = [v(), v()]; vX = [v(), v()]; vTR = v(4); vA0 = v(); vST = v(); vBC = v(4)
    vT = [v() for _ in range(4)]
    vAA = v(4)
    AF = v(16, 4)
    ACC = [v(16, 4) for _ in range(4)]
    WF = v(128, 4)
    L = 1
    a.label("k1_gemm")
    a(f"""
    s_mul_i32 s{t1}, s{S_XCD}, 27
    s_add_u32 s3, s3, s{t1}
    s_sub_u32 s3, s3, 5
    s_and_b32 s{CB}, s3, 7
    s_lshr_b32 s3, s3, 3
    s_mul_i32 s{T0}, s3, {313*607}
    s_add_u32 s{NT}, s{T0}, {313*607}
    s_lshr_b32 s{T0}, s{T0}, 14
    s_lshr_b32 s{NT}, s{NT}, 14
    s_sub_u32 s{NT}, s{NT}, s{T0}
    s_and_b32 s{CG}, s{S_WAVE}, 1
    s_lshr_b32 s{RG}, s{S_WAVE}, 1
    s_lshr_b32 s{t1}, s{CB}, 2
    s_lshl_b32 s{WOFF}, s{t1}, 18
    s_and_b32 s{t2}, s{CB}, 3
    s_lshl_b32 s{t2}, s{t2}, 8
    s_add_u32 s{WOFF}, s{WOFF}, s{t2}
    s_lshl_b32 s{t2}, s{S_WAVE}, 14
    s_add_u32 s{WOFF}, s{WOFF}, s{t2}
    v_lshrrev_b32 v{vT[0]}, 4, v{L}
    v_and_b32 v{vT[1]}, 15, v{L}
    v_lshlrev_b32 v{vT[2]}, 1, v{vT[0]}
    v_xor_b32 v{vT[2]}, v{vT[1]}, v{vT[2]}
    v_lshlrev_b32 v{vT[2]}, 4, v{vT[2]}
    v_lshl_add_u32 v{vW[0]}, v{vT[0]}, 10, v{vT[2]}
    v_xor_b32 v{vW[1]}, 128, v{vW[0]}
    s_lshl_b32 s{t2}, s{S_WAVE}, 2
    v_add_u32 v{vT[2]}, s{t2}, v{vT[0]}
    v_xor_b32 v{vT[3]}, v{vT[2]}, v{L}
    v_and_b32 v{vT[3]}, 15, v{vT[3]}
    v_lshlrev_b32 v{vT[3]}, 4, v{vT[3]}
    v_lshl_add_u32 v{vX[0]}, v{vT[2]}, 9, v{vT[3]}
    v_add_u32 v{vX[1]}, 256, v{vX[0]}
    s_lshl_b32 s{MW}, s{S_WAVE}, 12
    s_lshl_b32 s{M0B}, s{S_WAVE}, 10
    s_lshl_b32 s{XO}, s{T0}, 14
    s_waitcnt lgkmcnt(0)
    """)
    srd(a, WS_, S_W1, 513 * 1024)

    def wload(half, i):
        a(f"""
        s_add_u32 m0, s{MW}, {32768*half + 1024*i}
        s_add_u32 s{t1}, s{WOFF}, {131072*half + 4096*i}
        buffer_load_dwordx4 v{vW[i >> 1]}, s[{WS_}:{WS_+3}], s{t1} offen lds
        """)

    def xfirst(half, j):
        a(f"""
        s_add_u32 m0, s{M0B}, {65536 + 16384*j + 8192*half}
        s_add_u32 s{t1}, s{XO}, {16384*j}
        buffer_load_dwordx4 v{vX[half]}, s[{XS}:{XS+3}], s{t1} offen lds
        """)

    pending = [[], []]
    younger = [0, 0]
    nlab = [0]

    def defer(text):
        pending[0].append(text)
        pending[1].append(text)

    def xq(slot_addr):
        for i in range(2):
            defer(f"""
            s_add_u32 m0, s{M0B}, {slot_addr + 8192*i}
            s_nop 0
            buffer_load_dwordx4 v{vX[i]}, s[{XS}:{XS+3}], s{XO} offen lds
            {"s_add_u32 s%d, s%d, 16384" % (XO, XO) if i else ""}
            """)

    def xissue(i):
        h = i & 1
        if pending[h]:
            nlab[0] += 1
            a(f"s_cbranch_vcc{'nz' if h == 0 else 'z'} k1_skip{nlab[0]}")
            for _ in range(2):
                if pending[h]:
                    a(pending[h].pop(0))
            a.label(f"k1_skip{nlab[0]}")
            younger[h] = 0

    for i in range(4):
        wload(0, i)
    srd(a, XS, S_X, N * 512)
    for j in range(4):
        xfirst(0, j)
    for i in range(4):
        wload(1, i)
        xfirst(1, i)
    a(f"s_add_u32 s{XO}, s{XO}, 65536")
    srd(a, BS, S_B1, 1024)
    a(f"""
    s_lshl_b32 s{t1}, s{CB}, 1
    s_add_u32 s{t1}, s{t1}, s{CG}
    s_mul_i32 s{t2}, s{t1}, {SL}
    s_and_b32 s{t1}, s{t1}, 7
    s_lshl_b32 s{t1}, s{t1}, 7
    v_lshlrev_b32 v{vT[2]}, 1, v{vT[1]}
    s_mov_b32 s{SC}, {C_NLOG2E}
    s_cmp_ge_u32 s{CB}, 4
    s_cselect_b32 s{BS+2}, 1024, 0
    """)
    for U in range(4):
        a(f"buffer_load_ushort v{vBC+U}, v{vT[2]}, s[{BS}:{BS+3}], s{t1} offen offset:{32*U}")
    srd(a, OS, S_WS, 0 if cfg.get("x_nostore") else N * 128, off=f"s{t2}")
    a(f"""
    v_bfe_u32 v{vT[2]}, v{L}, 2, 2
    v_lshl_add_u32 v{vT[3]}, v{vT[0]}, 3, v{vT[2]}
    v_lshlrev_b32 v{vT[3]}, 8, v{vT[3]}
    v_and_b32 v{vTR}, 3, v{L}
    v_lshl_add_u32 v{vT[3]}, v{vTR}, 3, v{vT[3]}
    v_bfe_u32 v{vTR}, v{L}, 4, 1
    v_xor_b32 v{vTR}, s{CG}, v{vTR}
    v_lshl_add_u32 v{vT[2]}, v{vTR}, 2, v{vT[2]}
    v_lshl_add_u32 v{vTR}, v{vT[2]}, 5, v{vT[3]}
    v_xor_b32 v{vTR+1}, 32, v{vTR}
    v_xor_b32 v{vTR+2}, 64, v{vTR}
    v_xor_b32 v{vTR+3}, 96, v{vTR}
    v_xor_b32 v{vT[2]}, v{vT[1]}, v{vT[0]}
    v_lshlrev_b32 v{vT[2]}, 4, v{vT[2]}
    v_lshl_add_u32 v{vA0}, v{vT[1]}, 8, v{vT[2]}
    v_lshlrev_b32 v{vT[2]}, 3, v{vT[1]}
    v_lshl_add_u32 v{vST}, v{vT[0]}, 9, v{vT[2]}
    """)
    for r in range(3):
        lo = [65536, 65536 + 4 * 16384, 2 * 16384][r]
        hi = [65536, -2 * 16384, 65536 - 2 * 16384][r]
        a(f"""
        s_cmp_lt_u32 s{RG}, 2
        s_mov_b32 s{t2}, {hi & 0xffffffff}
        s_cselect_b32 s{TB[r]}, {lo}, s{t2}
        s_lshl_b32 s{t1}, s{RG}, 14
        s_add_u32 s{TB[r]}, s{TB[r]}, s{t1}
        s_add_u32 s{t1}, s{T0}, s{RG}
        s_add_u32 s{t1}, s{t1}, {4*r}
        s_lshl_b32 s{SO[r]}, s{t1}, 12
        """)

    def addr(r):
        a(f"v_add_u32 v{vAA}, s{TB[r]}, v{vA0}")
        for k in range(1, 4):
            a(f"v_xor_b32 v{vAA+k}, {64*k}, v{vAA}")

    def step(r, i):
        return (i & 1, i >> 1) if r == 0 else (i >> 3, i & 7)

    def rd(r, i):
        rho, ks = step(r, i)
        a(f"ds_read_b128 {vr(AF + 4*(i % 4), 4)}, v{vAA + (ks & 3)} offset:{4096*rho + 8192*(ks >> 2)}")

    def tr_ops(i):
        ks, half = i >> 1, i & 1
        return [f"ds_read_b64_tr_b16 {vr(WF + (ks*4 + U)*4 + 2*u, 2)}, v{vTR+U} offset:{ks*8192 + u*1024}"
                for U in (2 * half, 2 * half + 1) for u in range(2)]

    def acc(r, rho):
        return ACC[(2 * r + rho) % 4]

    def out_ops(r, rho, k):
        A = acc(r, rho)
        o = [f"v_fma_f32 v{A+4*U+k}, v{A+4*U+k}, s{SC}, v{vBC+U}" for U in range(4)]
        d = A + (k & 2) + 4 * (k & 1)
        return o, d

    def unit(r, rho, kk):
        A = acc(r, rho)
        o = []
        for k in (kk, kk + 1):
            o += [f"v_fma_f32 v{A+4*U+k}, v{A+4*U+k}, s{SC}, v{vBC+U}" for U in range(4)]
        o += [f"v_cvt_pk_bf16_f32 v{A+kk}, v{A+kk}, v{A+4+kk}",
              f"v_cvt_pk_bf16_f32 v{A+4+kk}, v{A+kk+1}, v{A+4+kk+1}",
              f"v_cvt_pk_bf16_f32 v{A+kk+1}, v{A+8+kk}, v{A+12+kk}",
              f"v_cvt_pk_bf16_f32 v{A+4+kk+1}, v{A+8+kk+1}, v{A+12+kk+1}"]
        o += [f"buffer_store_dwordx2 {vr(A+kk,2)}, v{vST}, s[{OS}:{OS+3}], s{SO[r]} offen offset:{(16*rho + kk)*128} {st_flags}",
              f"buffer_store_dwordx2 {vr(A+4+kk,2)}, v{vST}, s[{OS}:{OS+3}], s{SO[r]} offen offset:{(16*rho + kk + 1)*128} {st_flags}"]
        return o

    def mm(r, i, fill, per):
        rho, ks = step(r, i)
        A = acc(r, rho)
        for U in range(4):
            c = "0" if ks == 0 else vr(A + 4 * U, 4)
            a(f"v_mfma_f32_16x16x32_bf16 {vr(A+4*U,4)}, {vr(AF + 4*(i%4),4)}, {vr(WF + (ks*4+U)*4,4)}, {c}")
            for _ in range(per):
                if fill:
                    x = fill.pop(0)
                    a(x)
                    if x.startswith("buffer_store"):
                        younger[0] += 1
                        younger[1] += 1

    addr(0)
    a(f"""
    s_lshl_b32 s{t2}, s{CB}, 3
    s_add_u32 s{t2}, s{t2}, s{S_WAVE}
    s_mul_i32 s{t2}, s{t2}, 1536
    s_add_u32 s{t2}, s{t2}, s{XO}
    s_add_u32 s{t2}, s{t2}, 32768
    v_min_u32 v{vT[3]}, 11, v{L}
    v_lshlrev_b32 v{vT[3]}, 7, v{vT[3]}
    s_cmp_ge_u32 s{S_WAVE}, 4
    s_cselect_b64 vcc, -1, 0
    """)
    pr.stamp(1)
    a("s_waitcnt vmcnt(12)\ns_barrier")
    pr.stamp(2)
    pr.stamp(3)
    a("\n".join(tr_ops(0) + tr_ops(1)))
    rd(0, 0)
    rd(0, 1)
    defer(f"buffer_load_dword v{vT[3]}, v{vT[3]}, s[{XS}:{XS+3}], s{t2} offen")
    for j in range(4, 6):
        xq(65536 + 16384 * j)
    total0 = len(pending[0])

    for i in range(16):
        if i == 6:
            issued = total0 - max(len(pending[0]), len(pending[1]))
            a(f"s_waitcnt vmcnt({issued}) lgkmcnt(0)\ns_barrier")
            for j in range(2):
                xq(16384 * j)
        elif i == 14:
            assert not pending[0] and not pending[1]
            a("s_waitcnt vmcnt(0) lgkmcnt(0)\ns_barrier")
            addr(1)
            rd(1, 0)
            rd(1, 1)
            for j in (2 * 16384, 3 * 16384, 65536, 65536 + 16384):
                xq(j)
        elif i % 2 == 0:
            a("s_waitcnt lgkmcnt(1)")
        elif i != 15 and i != 7:
            a("s_waitcnt lgkmcnt(5)")
        mm(0, i, tr_ops(i + 2) if i + 2 < 16 else [], 1)
        if i + 2 < 16:
            rd(0, i + 2)
        else:
            rd(1, i - 12)
        if i == 8:
            for U in range(4):
                a(f"v_lshlrev_b32 v{vBC+U}, 16, v{vBC+U}\nv_mul_f32 v{vBC+U}, s{SC}, v{vBC+U}")
        xissue(i)
    pr.stamp(5)

    def later_round(r, fill):
        last = r == 2
        for i in range(16):
            if i == 12 and not last:
                assert not pending[0] and not pending[1]
                a(f"s_waitcnt vmcnt({min(younger)}) lgkmcnt(0)\ns_barrier")
                addr(r + 1)
            elif i < 12 or last:
                a(f"s_waitcnt lgkmcnt({min(3, 15-i) if last else 3})")
            if i == 10:
                fill += unit(r, 0, 0) + unit(r, 0, 2)
            start = cfg.get("first1", 4) if r == 1 else 2
            mm(r, i, fill if i >= start else [], cfg.get("per1", 2))
            if i + 4 < 16:
                rd(r, i + 4)
            elif not last:
                rd(r + 1, i - 12)
            xissue(i)
        return fill

    fill = later_round(1, unit(0, 0, 0) + unit(0, 0, 2) + unit(0, 1, 0) + unit(0, 1, 2))
    pr.stamp(7)
    a(f"""
    s_add_u32 s{t1}, s{RG}, 8
    s_cmp_ge_u32 s{t1}, s{NT}
    """)
    a("\n".join(fill))
    a("s_cbranch_scc1 k1_gemm_short")
    fill = later_round(2, unit(1, 1, 0) + unit(1, 1, 2))
    a("\n".join(fill))
    a("s_nop 7")
    a("\n".join(unit(2, 1, 0) + unit(2, 1, 2)))
    a.label("k1_gemm_end")
    pr.role(1)
    pr.stamp(8)
    pr.finish(9)
    a("s_endpgm")
    a.label("k1_gemm_short")
    a("s_nop 7")
    a("\n".join(unit(1, 1, 0) + unit(1, 1, 2)))
    a("s_branch k1_gemm_end")
    return v.n


def prep_role(a, cfg, pr):
    W2S, OS, W1S = 28, 32, 36
    t1, t2, SEL0, SEL1 = 40, 41, 42, 43
    L = 1
    vO, vT0, vT1, vT2, vS = 2, 3, 4, 5, 6
    LD, F = 8, 24
    a.label("k1_prep")
    a(f"""
    v_lshrrev_b32 v{vT0}, 4, v{L}
    v_and_b32 v{vT1}, 15, v{L}
    v_lshlrev_b32 v{vT1}, 2, v{vT1}
    v_lshl_add_u32 v{vO}, v{vT0}, 10, v{vT1}
    v_lshlrev_b32 v{vS}, 4, v{L}
    s_mov_b32 s{SEL0}, 0x05040100
    s_mov_b32 s{SEL1}, 0x07060302
    s_waitcnt lgkmcnt(0)
    """)
    srd(a, W2S, S_W2, 512 * 512)
    srd(a, OS, S_WS, WS_USED)
    srd(a, W1S, S_W1, 513 * 1024)
    a(f"""
    s_lshl_b32 s{t1}, s{S_WAVE}, 15
    s_lshl_b32 s{t2}, s{S_XCD}, 6
    s_add_u32 s{t1}, s{t1}, s{t2}
    """)
    for kk in range(2):
        for e in range(8):
            a(f"s_add_u32 s{t2}, s{t1}, {(8*kk + 16*(e & 3))*512}")
            a(f"buffer_load_dword v{LD + 8*kk + e}, v{vO}, s[{W2S}:{W2S+3}], s{t2} offen offset:{(e >> 2)*512}")
    a(f"""
    s_lshl_b32 s{t1}, s{S_XCD}, 15
    s_lshl_b32 s{t2}, s{S_WAVE}, 12
    s_add_u32 s{t1}, s{t1}, s{t2}
    s_add_u32 s{t1}, s{t1}, {OFF_W2F}
    """)
    for kk in range(2):
        a(f"s_waitcnt vmcnt({8 if kk == 0 else 2})")
        for U in range(2):
            f = F + 8 * kk + 4 * U
            for d in range(4):
                a(f"v_perm_b32 v{f+d}, v{LD+8*kk+2*d+1}, v{LD+8*kk+2*d}, s{SEL0+U}")
            a(f"buffer_store_dwordx4 {vr(f,4)}, v{vS}, s[{OS}:{OS+3}], s{t1} offen offset:{(2*kk+U)*1024} sc1")
    a(f"""
    s_cmp_eq_u32 s{S_WAVE}, 1
    s_cbranch_scc1 k1_prep_zero
    s_cmp_lg_u32 s{S_WAVE}, 0
    s_cbranch_scc1 k1_exit
    v_and_b32 v{vT0}, 3, v{L}
    v_lshlrev_b32 v{vT0}, 4, v{vT0}
    v_bfe_u32 v{vT1}, v{L}, 3, 1
    v_lshl_add_u32 v{vT0}, v{vT1}, 3, v{vT0}
    v_bfe_u32 v{vT1}, v{L}, 2, 1
    v_add_u32 v{vT0}, v{vT0}, v{vT1}
    v_lshlrev_b32 v{vT0}, 1, v{vT0}
    s_lshl_b32 s{t1}, s{S_XCD}, 7
    s_add_u32 s{t1}, s{t1}, {512*1024}
    """)
    for c in range(4):
        a(f"buffer_load_ushort v{40+c}, v{vT0}, s[{W1S}:{W1S+3}], s{t1} offen offset:{4*c}")
    a(f"""
    v_bfe_u32 v{vT1}, v{L}, 4, 1
    v_lshrrev_b32 v{vT2}, 5, v{L}
    v_cmp_eq_u32 vcc, v{vT1}, v{vT2}
    v_mov_b32 v{vT1}, {C_NLOG2E}
    v_lshlrev_b32 v{vT0}, 3, v{L}
    s_lshl_b32 s{t1}, s{S_XCD}, 9
    s_add_u32 s{t1}, s{t1}, {OFF_A3T}
    s_waitcnt vmcnt(0)
    """)
    for c in range(4):
        a(f"v_lshlrev_b32 v{40+c}, 16, v{40+c}")
        a(f"v_mul_f32 v{40+c}, v{40+c}, v{vT1}")
    a(f"""
    v_cvt_pk_bf16_f32 v44, v40, v41
    v_cvt_pk_bf16_f32 v45, v42, v43
    v_cndmask_b32 v44, 0, v44, vcc
    v_cndmask_b32 v45, 0, v45, vcc
    buffer_store_dwordx2 v[44:45], v{vT0}, s[{OS}:{OS+3}], s{t1} offen sc1
    s_endpgm
    """)
    a.label("k1_prep_zero")
    a(f"""
    v_lshrrev_b32 v{vT0}, 5, v{L}
    s_mov_b32 s{t1}, {OFF_Q}
    v_mul_lo_u32 v{vT0}, v{vT0}, s{t1}
    v_and_b32 v{vT1}, 31, v{L}
    v_lshl_add_u32 v{vT0}, v{vT1}, 2, v{vT0}
    s_mul_i32 s{t1}, s{S_XCD}, {SL}
    s_add_u32 s{t1}, s{t1}, {N*128}
    v_mov_b32 v{vT1}, 0
    buffer_store_dword v{vT1}, v{vT0}, s[{OS}:{OS+3}], s{t1} offen sc1
    s_endpgm
    """)


def sort_role(a, cfg, pr):
    DS_, SS, ES, OS, DB = 28, 32, 36, 40, 44
    SW, t1, t2, HI, M313, PSZ, BASEID, INB, TAG, SEG = 48, 49, 50, 51, 52, 53, 54, 55, 58, 59
    EX = 56
    PC, FLAG, DH, GMAX, GMIN, CNT, RB, DUMMY, STG, OUT = 0, 128, 256, 512, 768, 1024, 3072, 8192, 12288, 69632
    L = 1
    v = Alloc(2, 128)
    vO8, vO4, vO16, vONE, vL4, vW16 = v(), v(), v(), v(), v(), v()
    vT0 = v(8, 2)
    vT = [vT0 + i for i in range(8)]
    vD = v(10); vS = v(10); vE = v(5)
    vPool = v(10); vSlot = v(14)
    vRec = v(28, 4)
    vGA = v(4)
    vFill = v(4, 4)
    limit = cfg.get("poll_limit", 20000)
    ent = "nt" if cfg.get("ent") else ""
    PSTR = 31 * 1792
    seg_of = [0, 0, 1, 1, 2, 2, 3]
    cut = {1: 48, 3: 32, 5: 16}

    def seg_store(i, regs):
        g = vGA + (1 + i // 2 if i in cut else 0)
        a(f"s_add_u32 s{t1}, s{SEG}, {1024*i + seg_of[i]*PSTR}")
        a(f"buffer_store_dwordx4 {vr(regs,4)}, v{g}, s[{OS}:{OS+3}], s{t1} offen sc1")

    a.label("k1_sort")
    a(f"""
    s_lshl_b32 s{SW}, s{S_XCD}, 2
    s_add_u32 s{SW}, s{SW}, s3
    v_lshlrev_b32 v{vO8}, 3, v0
    v_lshlrev_b32 v{vO4}, 2, v0
    v_lshlrev_b32 v{vO16}, 4, v0
    s_mul_i32 s{t1}, s{SW}, 20000
    s_mul_i32 s{t2}, s{SW}, 10000
    v_lshlrev_b32 v{vGA}, 4, v{L}
    v_add_u32 v{vT[0]}, {PSTR}, v{vGA}
    """)
    for j, i in enumerate(cut):
        a(f"v_cmp_gt_u32 vcc, {cut[i]}, v{L}\nv_mov_b32 v{vFill+j}, 0\ns_nop 0\nv_cndmask_b32 v{vGA+1+j}, v{vT[0]}, v{vGA}, vcc")
    a(f"""
    v_mov_b32 v{vFill+3}, 0
    s_mul_i32 s{INB}, s{S_WAVE}, 7168
    v_add_u32 v{vW16}, s{INB}, v{vGA}
    s_mul_i32 s{SEG}, s{S_WAVE}, {4*57344}
    s_mul_i32 s{HI}, s{SW}, 1792
    s_add_u32 s{SEG}, s{SEG}, s{HI}
    s_add_u32 s{SEG}, s{SEG}, {OFF_SEG}
    s_mul_i32 s{INB}, s{SW}, 57344
    s_add_u32 s{INB}, s{INB}, {OFF_SEG}
    s_waitcnt lgkmcnt(0)
    """)
    srd(a, DS_, S_DST, E * 4)
    srd(a, SS, S_SRC, E * 4)
    srd(a, ES, S_E, E * 2)
    for i in range(5):
        a(f"""
        buffer_load_dwordx2 {vr(vD+2*i,2)}, v{vO8}, s[{DS_}:{DS_+3}], s{t1} offen {ent}
        buffer_load_dwordx2 {vr(vS+2*i,2)}, v{vO8}, s[{SS}:{SS+3}], s{t1} offen {ent}
        buffer_load_dword v{vE+i}, v{vO4}, s[{ES}:{ES+3}], s{t2} offen {ent}
        s_add_u32 s{t1}, s{t1}, 4096
        s_add_u32 s{t2}, s{t2}, 2048
        """)
    srd(a, OS, S_WS, WS_USED)
    srd(a, DB, S_DBG, 128)
    a(f"""
    v_mov_b32 v{vONE}, 1
    s_mov_b32 s{HI}, 0xffff0000
    s_mov_b32 s{M313}, -313
    s_brev_b32 s{TAG}, 1
    v_lshrrev_b32 v{vT[0]}, 6, v0
    v_cmp_eq_u32 vcc, 3, v{vT[0]}
    v_mov_b32 v{vT[1]}, 0
    v_lshlrev_b32 v{vL4}, 2, v{L}
    v_cndmask_b32 v{vT[0]}, 0, -1, vcc
    ds_write_b32 v{vO4}, v{vT[0]}
    ds_write_b32 v{vO4}, v{vT[1]} offset:2048
    v_add_u32 v{vT[3]}, {DUMMY}, v{vL4}
    ds_write_b32 v{vO4}, v{vT[3]} offset:4096
    v_add_u32 v{vRec+1}, {0x80000000 + 320*4}, v{vL4}
    v_mov_b32 v{vRec}, 0
    v_mov_b32 v{vRec+2}, 0
    v_mov_b32 v{vRec+3}, v{vRec+1}
    """)
    early = cfg.get("clr_early", 0)
    for i in range(7):
        a(f"ds_write_b128 v{vO16}, {vr(vRec,4)} offset:{STG + 8192*i}")
        if i >= 7 - early:
            seg_store(i - (7 - early), vFill)
    a("s_waitcnt lgkmcnt(0)\ns_barrier")
    pr.stamp(1)
    cleared = early
    for k in range(10):
        i = k // 2
        if k % 2 == 0:
            a(f"s_waitcnt vmcnt({12 - 3*i + cleared})")
        if k < 8 and cleared < 7 and (k % 2 == 1 or 7 - cleared > (8 - k) // 2):
            seg_store(cleared, vFill)
            cleared += 1
        if k == 8:
            a(f"v_cmp_gt_u32 vcc, 452, v0\ns_and_saveexec_b64 s[{EX}:{EX+1}], vcc")
        a(f"""
        v_mul_u32_u24 v{vPool+k}, 13401, v{vD+k}
        v_lshrrev_b32 v{vPool+k}, 22, v{vPool+k}
        v_lshlrev_b32 v{vT[k%2]}, 2, v{vPool+k}
        ds_add_rtn_u32 v{vSlot+k}, v{vT[k%2]}, v{vONE} offset:{PC}
        v_mad_i32_i24 v{vRec+2*k+1}, v{vPool+k}, s{M313}, v{vD+k}
        v_lshl_or_b32 v{vRec+2*k+1}, v{vRec+2*k+1}, 2, s{TAG}
        v_mul_u32_u24 v{vPool+k}, 1792, v{vPool+k}
        """)
        if k % 2 == 0:
            a(f"v_lshl_or_b32 v{vRec+2*k}, v{vE+i}, 16, v{vS+k}")
        else:
            a(f"v_and_or_b32 v{vRec+2*k}, v{vE+i}, s{HI}, v{vS+k}")
    assert cleared == 7
    a(f"s_mov_b64 exec, s[{EX}:{EX+1}]")
    a(f"v_mov_b32 v{vT[2]}, {0x80000000 + 384*4}")
    for k in range(10):
        if k == 8:
            a(f"v_cmp_gt_u32 vcc, 452, v0\ns_and_saveexec_b64 s[{EX}:{EX+1}], vcc")
        a(f"""
        s_waitcnt lgkmcnt(9)
        v_cmp_lt_u32 vcc, 222, v{vSlot+k}
        v_min_u32 v{vSlot+k}, 223, v{vSlot+k}
        v_lshl_add_u32 v{vPool+k}, v{vSlot+k}, 3, v{vPool+k}
        v_cndmask_b32 v{vRec+2*k+1}, v{vRec+2*k+1}, v{vT[2]}, vcc
        ds_write_b64 v{vPool+k}, {vr(vRec+2*k,2)} offset:{STG}
        """)
    a(f"""
    s_mov_b64 exec, s[{EX}:{EX+1}]
    s_lshl_b32 s{t2}, s{SW}, 2
    s_cmp_eq_u32 s{S_WAVE}, 0
    s_cselect_b32 s{t2}, s{t2}, 0x1000
    s_waitcnt vmcnt(0) lgkmcnt(0)
    s_barrier
    s_mov_b64 exec, 1
    buffer_store_dword v{vONE}, off, s[{DB}:{DB+3}], s{t2} sc1
    s_mov_b64 exec, -1
    """)
    pr.stamp(2)
    for i in range(7):
        a(f"ds_read_b128 {vr(vRec+4*i,4)}, v{vW16} offset:{STG + 1024*i}")
    for i in range(7):
        a(f"s_waitcnt lgkmcnt({6-i})")
        seg_store(i, vRec + 4 * i)
    pr.stamp(3)
    a(f"""
    s_lshl_b32 s{SEG}, s{S_WAVE}, 4
    v_and_b32 v{vT[7]}, 12, v{vL4}
    v_add_u32 v{vT[4]}, {OUT}, v{vO16}
    """)
    for k in range(4):
        a(f"v_mov_b32 v{vFill+k}, {N}")
    for i in range(6):
        a(f"ds_write_b128 v{vT[4]}, {vr(vFill,4)} offset:{8192*i}")
    a(f"""
    s_mul_i32 s{BASEID}, s{SW}, 313
    s_sub_u32 s{PSZ}, {N}, s{BASEID}
    s_min_u32 s{PSZ}, s{PSZ}, 313
    s_mov_b32 s{t2}, 0
    """)
    a.label("k1_sort_cleared")
    a(f"""
    buffer_load_dword v{vT[6]}, v{vT[7]}, s[{DB}:{DB+3}], s{SEG} offen sc1
    s_add_u32 s{t2}, s{t2}, 1
    s_cmp_ge_u32 s{t2}, {limit}
    s_waitcnt vmcnt(0)
    v_cmp_eq_u32 vcc, 0, v{vT[6]}
    s_cbranch_vccz k1_sort_recv
    s_cbranch_scc0 k1_sort_cleared
    s_branch k1_sort_lost
    """)
    a.label("k1_sort_recv")
    for i in range(7):
        a(f"s_add_u32 s{t1}, s{INB}, {1024*i}")
        a(f"buffer_load_dwordx4 {vr(vRec+4*i,4)}, v{vW16}, s[{OS}:{OS+3}], s{t1} offen sc1")
    a(f"s_add_u32 s{t2}, s{t2}, 1\ns_cmp_ge_u32 s{t2}, {limit}\nv_mov_b32 v{vT[0]}, -1")
    for i in range(7):
        a(f"s_waitcnt vmcnt({6-i})")
        a(f"v_and_b32 v{vT[0]}, v{vT[0]}, v{vRec+4*i+1}\nv_and_b32 v{vT[0]}, v{vT[0]}, v{vRec+4*i+3}")
    a(f"""
    v_cmp_le_i32 vcc, 0, v{vT[0]}
    s_cbranch_vccz k1_sort_got
    s_cbranch_scc0 k1_sort_recv
    """)
    a.label("k1_sort_lost")
    for k in range(14):
        a(f"v_mov_b32 v{vRec+2*k+1}, {384*4}")
    a.label("k1_sort_got")
    pr.stamp(4)
    for k in range(14):
        r = vRec + 2 * k + 1
        a(f"v_and_b32 v{r}, 0xfff, v{r}")
        a(f"ds_add_rtn_u32 v{vSlot+k}, v{r}, v{vONE} offset:{CNT}")
    vd, vkey, vr_, vpos, vG, vm, vtt, vk = vD, vD + 1, vD + 2, vD + 3, vD + 4, vD + 5, vD + 6, vD + 7
    vg = vS
    a("s_waitcnt lgkmcnt(0)\ns_barrier")
    pr.stamp(5)
    a(f"""
    s_cmp_ge_u32 s{S_WAVE}, 5
    s_cbranch_scc1 k1_sort_s1
    ds_read_b32 v{vd}, v{vO4} offset:{CNT}
    s_waitcnt lgkmcnt(0)
    v_min_u32 v{vkey}, 63, v{vd}
    v_sub_u32 v{vkey}, 63, v{vkey}
    v_lshlrev_b32 v{vkey}, 2, v{vkey}
    ds_add_rtn_u32 v{vr_}, v{vkey}, v{vONE} offset:{DH}
    s_waitcnt lgkmcnt(0)
    """)
    a.label("k1_sort_s1")
    a(f"""
    s_barrier
    s_cmp_ge_u32 s{S_WAVE}, 5
    s_cbranch_scc1 k1_sort_s2
    v_lshlrev_b32 v{vT[0]}, 2, v{L}
    ds_read_b32 v{vT[1]}, v{vT[0]} offset:{DH}
    s_waitcnt lgkmcnt(0)
    v_mov_b32 v{vT[2]}, v{vT[1]}
    """)
    for sh in (1, 2, 4, 8):
        a(f"s_nop 1\nv_add_u32_dpp v{vT[2]}, v{vT[2]}, v{vT[2]} row_shr:{sh} row_mask:0xf bank_mask:0xf bound_ctrl:1")
    a(f"s_nop 1\nv_add_u32_dpp v{vT[2]}, v{vT[2]}, v{vT[2]} row_bcast:15 row_mask:0xa bank_mask:0xf")
    a(f"s_nop 1\nv_add_u32_dpp v{vT[2]}, v{vT[2]}, v{vT[2]} row_bcast:31 row_mask:0xc bank_mask:0xf")
    a(f"""
    v_sub_u32 v{vT[2]}, v{vT[2]}, v{vT[1]}
    ds_bpermute_b32 v{vpos}, v{vkey}, v{vT[2]}
    s_waitcnt lgkmcnt(0)
    v_add_u32 v{vpos}, v{vpos}, v{vr_}
    v_lshrrev_b32 v{vG}, 3, v{vpos}
    v_and_b32 v{vm}, 7, v{vpos}
    v_lshlrev_b32 v{vT[0]}, 2, v{vG}
    ds_max_u32 v{vT[0]}, v{vd} offset:{GMAX}
    v_cmp_gt_u32 vcc, s{PSZ}, v0
    s_nop 1
    v_cndmask_b32 v{vT[1]}, -1, v{vd}, vcc
    ds_min_u32 v{vT[0]}, v{vT[1]} offset:{GMIN}
    v_lshrrev_b32 v{vtt}, 3, v{vG}
    """)
    DEAL = [[0, 1, 2, 3, 4, 5, 6, 7], [7, 4, 3, 5, 1, 2, 6, 0], [7, 5, 4, 0, 2, 3, 1, 6], [7, 3, 5, 6, 2, 1, 0, 4], [7, 6, 4, 2, 5, 3, 1, 0]]
    if cfg.get("deal") == "c":
        DEAL = [DEAL[0]] + [DEAL[0][::-1]] * 4
    vMOR = vD + 8
    for r in range(5):
        mor = sum(DEAL[r].index(j) << (4 * j) for j in range(8))
        if r == 0:
            a(f"v_mov_b32 v{vMOR}, {mor}")
        else:
            a(f"v_cmp_eq_u32 vcc, {r}, v{vtt}\nv_mov_b32 v{vT[1]}, {mor}\ns_nop 0\nv_cndmask_b32 v{vMOR}, v{vMOR}, v{vT[1]}, vcc")
    a("s_waitcnt lgkmcnt(0)")
    a.label("k1_sort_s2")
    a(f"""
    s_barrier
    s_cmp_ge_u32 s{S_WAVE}, 5
    s_cbranch_scc1 k1_sort_s3
    ds_read_b32 v{vg+5}, v{vT[0]} offset:{GMAX}
    ds_read_b32 v{vg+6}, v{vT[0]} offset:{GMIN}
    v_mov_b32 v{vT[3]}, {CNT + 384*4}
    ds_read_b32 v{vg+7}, v{vT[3]}
    """)
    if cfg.get("greedy", 0):
        vgm, vSi, vSj, vI4, vJ4, vRk = vPool, vPool + 1, vPool + 2, vPool + 3, vPool + 4, vPool + 5
        vOwn = vPool + 6
        a(f"""
        ds_read_b32 v{vgm}, v{vL4} offset:{GMAX}
        v_lshrrev_b32 v{vI4}, 3, v{L}
        v_and_b32 v{vJ4}, 7, v{L}
        v_cmp_lt_u32 s[{EX}:{EX+1}], v{vJ4}, v{vI4}
        v_lshlrev_b32 v{vI4}, 2, v{vI4}
        v_lshlrev_b32 v{vJ4}, 2, v{vJ4}
        v_and_b32 v{vT[2]}, 56, v{L}
        v_mov_b32 v{vOwn}, 0
        s_waitcnt lgkmcnt(0)
        ds_bpermute_b32 v{vSi}, v{vI4}, v{vgm}
        ds_bpermute_b32 v{vSj}, v{vJ4}, v{vgm}
        v_cndmask_b32 v{vT[5]}, 0, 1, s[{EX}:{EX+1}]
        v_lshrrev_b32 v{vOwn}, 2, v{vI4}
        s_waitcnt lgkmcnt(0)
        v_mov_b32 v{vg}, v{vSi}
        """)
        for n, r in enumerate((4, 3, 1, 2)):
            a(f"""
            v_add_u32 v{vT[4]}, v{vSi}, v{vT[5]}
            v_cmp_lt_u32 vcc, v{vSj}, v{vT[4]}
            s_nop 1
            v_lshrrev_b64 v[{vT[6]}:{vT[7]}], v{vT[2]}, vcc
            v_and_b32 v{vRk}, 0xff, v{vT[6]}
            v_bcnt_u32_b32 v{vRk}, v{vRk}, 0
            v_lshl_or_b32 v{vOwn}, v{vRk}, {3*r}, v{vOwn}
            v_lshlrev_b32 v{vRk}, 2, v{vRk}
            ds_bpermute_b32 v{vg+r}, v{vRk}, v{vgm} offset:{32*r}
            """)
            if n < 3:
                a(f"""
                v_lshlrev_b32 v{vT[4]}, 3, v{vJ4}
                s_waitcnt lgkmcnt(0)
                v_add_u32 v{vSi}, v{vSi}, v{vg+r}
                ds_bpermute_b32 v{vSj}, v{vT[4]}, v{vSi}
                s_waitcnt lgkmcnt(0)
                """)
        a(f"""
        v_mul_u32_u24 v{vT[4]}, 3, v{vtt}
        v_and_b32 v{vT[5]}, 7, v{vG}
        v_mov_b32 v{vk}, 0
        s_waitcnt lgkmcnt(0)
        """)
        for i in range(1, 8):
            a(f"""
            v_readlane_b32 s{t1}, v{vOwn}, {8*i}
            s_nop 1
            v_bfe_u32 v{vT[6]}, s{t1}, v{vT[4]}, 3
            v_cmp_eq_u32 vcc, v{vT[6]}, v{vT[5]}
            s_nop 1
            v_cndmask_b32 v{vk}, v{vk}, {i}, vcc
            """)
        a(f"v_lshlrev_b32 v{vT[4]}, 5, v{vk}")
        for r in range(5):
            a(f"ds_bpermute_b32 v{vg+r}, v{vT[4]}, v{vg+r}")
    else:
        a(f"""
        v_and_b32 v{vT[2]}, 28, v{vT[0]}
        v_bfe_u32 v{vk}, v{vMOR}, v{vT[2]}, 3
        v_lshlrev_b32 v{vT[1]}, 2, v{vk}
        ds_read_b32 v{vg+0}, v{vT[1]} offset:{GMAX}
        """)
        for r in range(1, 5):
            rom = sum(x << (4 * i) for i, x in enumerate(DEAL[r]))
            a(f"""
            s_mov_b32 s{t1}, {rom}
            v_bfe_u32 v{vT[2]}, s{t1}, v{vT[1]}, 3
            v_lshlrev_b32 v{vT[2]}, 2, v{vT[2]}
            ds_read_b32 v{vg+r}, v{vT[2]} offset:{GMAX+32*r}
            """)
    a(f"""
    v_mov_b32 v{vT[4]}, 0
    v_mov_b32 v{vT[5]}, 0
    s_waitcnt lgkmcnt(0)
    """)
    a(f"""
    v_lshlrev_b32 v{vT[7]}, 2, v{vtt}
    v_mov_b32 v{vT[6]}, 0x31420
    v_lshrrev_b32 v{vT[7]}, v{vT[7]}, v{vT[6]}
    v_and_b32 v{vT[7]}, 15, v{vT[7]}
    """)
    for t in range(5):
        a(f"""
        v_add_u32 v{vg+t}, 1, v{vg+t}
        v_lshrrev_b32 v{vg+t}, 1, v{vg+t}
        v_cmp_lt_u32 vcc, {2*t % 5}, v{vT[7]}
        v_max_u32 v{vg+t}, 1, v{vg+t}
        v_add_u32 v{vT[5]}, v{vT[5]}, v{vg+t}
        v_cndmask_b32 v{vT[6]}, 0, v{vg+t}, vcc
        v_add_u32 v{vT[4]}, v{vT[4]}, v{vT[6]}
        """)
    a(f"""
    v_cmp_lt_u32 vcc, 64, v{vT[5]}
    v_mov_b32 v{vT[3]}, {FLAG+4}
    s_cbranch_vccz k1_sort_short
    ds_write_b32 v{vT[3]}, v{vONE}
    """)
    a.label("k1_sort_short")
    a(f"""
    v_cmp_lt_u32 vcc, {MAXT-1}, v{vT[5]}
    v_cmp_ne_u32 s[{EX}:{EX+1}], 0, v{vg+7}
    s_or_b64 vcc, vcc, s[{EX}:{EX+1}]
    s_cbranch_vccz k1_sort_ok
    v_mov_b32 v{vT[3]}, {FLAG}
    ds_write_b32 v{vT[3]}, v{vONE}
    """)
    a.label("k1_sort_ok")
    a(f"""
    v_mul_u32_u24 v{vT[1]}, {MEMB}, v{vk}
    v_add_u32 v{vT[1]}, {OUT}, v{vT[1]}
    v_lshl_add_u32 v{vT[2]}, v{vm}, 2, v{vT[1]}
    v_lshl_add_u32 v{vT[3]}, v{vT[4]}, 6, v{vT[2]}
    v_add_u32 v{vT[3]}, 256, v{vT[3]}
    ds_write_b32 v{vO4}, v{vT[3]} offset:{RB}
    v_cmp_gt_u32 vcc, s{PSZ}, v0
    v_add_u32 v{vT[3]}, s{BASEID}, v0
    v_mov_b32 v{vT[6]}, {N}
    v_cndmask_b32 v{vT[3]}, v{vT[6]}, v{vT[3]}, vcc
    v_lshl_or_b32 v{vT[3]}, v{vd}, 16, v{vT[3]}
    v_lshl_add_u32 v{vT[2]}, v{vtt}, 5, v{vT[2]}
    ds_write_b32 v{vT[2]}, v{vT[3]}
    v_max_u32 v{vg+5}, 1, v{vg+5}
    v_and_b32 v{vT[6]}, 1, v{vg+5}
    v_subrev_u32 v{vg+5}, 1, v{vg+5}
    v_lshrrev_b32 v{vg+5}, 1, v{vg+5}
    v_lshrrev_b32 v{vg+6}, 1, v{vg+6}
    v_cmp_lt_u32 vcc, v{vg+6}, v{vg+5}
    v_cmp_gt_u32 s[{EX}:{EX+1}], 2, v{vg+5}
    v_lshl_or_b32 v{vT[4]}, v{vT[4]}, 10, v{vg+5}
    s_or_b64 vcc, vcc, s[{EX}:{EX+1}]
    v_lshl_or_b32 v{vT[4]}, v{vT[6]}, 8, v{vT[4]}
    v_cndmask_b32 v{vT[6]}, 0, 1, vcc
    v_lshl_or_b32 v{vT[4]}, v{vT[6]}, 9, v{vT[4]}
    v_lshl_add_u32 v{vT[1]}, v{vtt}, 2, v{vT[1]}
    ds_write_b32 v{vT[1]}, v{vT[4]} offset:192
    s_waitcnt lgkmcnt(0)
    """)
    a.label("k1_sort_s3")
    a("s_barrier")
    pr.stamp(6)
    a(f"""
    s_mul_i32 s{t2}, s{S_WAVE}, {MEMB}
    s_add_u32 s{SEG}, s{t2}, {OUT}
    v_lshrrev_b32 v{vT[2]}, 4, v{L}
    v_lshl_add_u32 v{vT[2]}, v{vT[2]}, 2, s{SEG}
    v_mov_b32 v{vT[3]}, s{SEG}
    ds_read_b32 v{vT[2]}, v{vT[2]} offset:192
    ds_read_b32 v{vT[3]}, v{vT[3]} offset:208
    v_mov_b32 v{vT[0]}, {FLAG}
    ds_read_b64 v[{vT[0]}:{vT[1]}], v{vT[0]}
    """)
    for k in range(14):
        a(f"ds_read_b32 v{vPool + k if k < 10 else vE + k - 10}, v{vRec+2*k+1} offset:{RB}")
    a(f"""
    s_waitcnt lgkmcnt(14)
    v_readfirstlane_b32 s{t2}, v{vT[0]}
    v_readfirstlane_b32 s{HI}, v{vT[1]}
    s_cmp_lg_u32 s{t2}, 0
    s_cbranch_scc1 k1_sort_s4
    """)
    for k in range(14):
        b = vPool + k if k < 10 else vE + k - 10
        a(f"""
        s_waitcnt lgkmcnt(13)
        v_lshl_add_u32 v{b}, v{vSlot+k}, 5, v{b}
        ds_write_b32 v{b}, v{vRec+2*k}
        """)
    a.label("k1_sort_s4")
    a(f"""
    v_mov_b32 v{vT[1]}, s{SEG}
    ds_write_b32 v{vT[1]}, v{vT[0]} offset:212
    v_add_u32 v{vT[1]}, s{SEG}, v{vGA}
    v_and_b32 v{vT[5]}, 60, v{vL4}
    v_add_u32 v{vT[5]}, s{SEG}, v{vT[5]}
    v_and_b32 v{vT[4]}, 0x300, v{vGA}
    v_add_u32 v{vT[4]}, v{vT[4]}, v{vT[5]}
    v_bfe_u32 v{vT[2]}, v{vT[2]}, 10, 7
    v_bfe_u32 v{vT[3]}, v{vT[3]}, 10, 7
    v_lshl_add_u32 v{vT[2]}, v{vT[2]}, 6, v{vT[5]}
    v_lshl_add_u32 v{vT[3]}, v{vT[3]}, 6, v{vT[5]}
    s_lshl_b32 s{t2}, s{SW}, 3
    s_add_u32 s{t2}, s{t2}, s{S_WAVE}
    s_mul_i32 s{t1}, s{t2}, {MEMB}
    s_add_u32 s{t1}, s{t1}, {OFF_LIST}
    s_mul_i32 s{t2}, s{t2}, 1280
    s_add_u32 s{t2}, s{t2}, {OFF_FIRST}
    s_cmp_eq_u32 s{HI}, 0
    s_waitcnt lgkmcnt(0)
    s_barrier
    """)
    pr.stamp(7)

    def quad_read(dst, addr):
        a(f"ds_read2_b32 {vr(dst,2)}, v{addr} offset0:64 offset1:80")
        a(f"ds_read2_b32 {vr(dst+2,2)}, v{addr} offset0:96 offset1:112")

    quad_read(vRec, vT[2])
    quad_read(vRec + 4, vT[3])
    a(f"ds_read_b128 {vr(vRec+8,4)}, v{vT[1]}")
    for i in range(4):
        quad_read(vRec + 12 + 4 * i, vT[4])
        a(f"v_add_u32 v{vT[4]}, 1024, v{vT[4]}")
    a(f"""
    s_waitcnt lgkmcnt(8)
    buffer_store_dwordx4 {vr(vRec,4)}, v{vGA}, s[{OS}:{OS+3}], s{t2} offen sc1
    s_mov_b64 exec, 0xffff
    buffer_store_dwordx4 {vr(vRec+4,4)}, v{vGA}, s[{OS}:{OS+3}], s{t2} offen offset:1024 sc1
    buffer_store_dwordx4 {vr(vRec+8,4)}, v{vGA}, s[{OS}:{OS+3}], s{t1} offen sc1
    s_mov_b64 exec, -1
    """)
    for i in range(4):
        a(f"s_waitcnt lgkmcnt({6-2*i})")
        a(f"buffer_store_dwordx4 {vr(vRec+12+4*i,4)}, v{vGA}, s[{OS}:{OS+3}], s{t1} offen offset:{256 + 1024*i} sc1")
    a(f"s_cbranch_scc1 k1_sort_end\ns_add_u32 s{t1}, s{t1}, 4096")
    quad_read(vFill, vT[4])
    a(f"s_waitcnt lgkmcnt(0)\nbuffer_store_dwordx4 {vr(vFill,4)}, v{vGA}, s[{OS}:{OS+3}], s{t1} offen offset:256 sc1")
    a.label("k1_sort_end")
    pr.role(2)
    pr.stamp(8)
    pr.finish(9)
    a("s_endpgm")


def k1(cfg):
    a = Asm()
    pr = Prof(a, cfg, 0, 250)
    entry(a, "k1", pr)
    a(f"""
    s_and_b32 s{S_XCD}, s2, 7
    s_lshr_b32 s3, s2, 3
    s_cmp_ge_u32 s3, 5
    s_cbranch_scc1 k1_gemm
    s_cmp_lt_u32 s3, 4
    s_cbranch_scc1 k1_sort
    """)
    if cfg.get("codepf", 1):
        a("s_getpc_b64 s[40:41]")
        a.label("k1_pc")
        a(f"""
        s_sub_u32 s40, s40, k1_pc-mpnn_code_begin
        s_subb_u32 s41, s41, 0
        v_lshlrev_b32 v46, 7, v0
        v_min_u32 v46, mpnn_code_end-mpnn_code_begin-4, v46
        v_mov_b32 v47, s41
        v_add_co_u32 v46, vcc, s40, v46
        s_nop 1
        v_addc_co_u32 v47, vcc, 0, v47, vcc
        global_load_dword v48, v[46:47], off
        """)
    a("s_branch k1_prep")
    nv = gemm_role(a, cfg, pr)
    prep_role(a, cfg, pr)
    sort_role(a, cfg, pr)
    if pr.on:
        nv = 256
    a.label("k1_exit")
    a("s_endpgm")
    return a, nv
```

```python
from asmlib import Asm, Alloc, vr, sr
from layout import *
from k1 import entry, srd, Prof, S_X, S_E, S_SRC, S_DST, S_W1, S_B1, S_W2, S_B2, S_OUT, S_DBG, S_WS, S_WAVE

OUTOFF, DEGF, MAP, DEGC, FLAG, DONE = 0, 256, 1024, 2304, 2560, 2816
EXP = 4096
A3L = EXP + MAXT * 1024
HB = A3L + 4096
HS = 1040
K2_LDS = HB + 48 * HS
R = 4
G2 = [[], [0], [1, 2], [3], [4, 5], [6, 7]]


def k2(cfg):
    a = Asm()
    PS, QS, WSR, OS, X0, X1, X2 = 28, 32, 36, 40, 44, 48, 52
    HD = 56
    s = Alloc(64, 100)
    NT1, POF, SLO, FL = s(6), s(6), s(6), s(5)
    t1 = s(4, 2)
    t2, t3, t4 = t1 + 1, t1 + 2, t1 + 3
    W2O, GS, MB, S128 = s(), s(), s(), s()
    SX = s(2, 2)
    lo = Alloc(4, 24)
    SB, SE, SBASE = lo(2, 2), lo(2, 2), lo(2, 2)
    EV, RP, RC, STEP, ODD, PIDX, PSL, QSO = (lo() for _ in range(8))
    HWO = lo(5)
    L = 1
    v = Alloc(2, 256)
    vC16, vEXR, vL16, vHW, vA3B, vA3A, vDEG, vCHK, vCOL, vB2, vONE, vQA, vTMP, vDONE, vPOLL = (v() for _ in range(15))
    INFO = v(5)
    A3 = v(2)
    Y = [v(16, 4), v(16, 4)]
    T = v(24, 4)
    RCP = T + 16
    C = v(16, 4)
    NR = v(8); DR = v(8)
    DATA = [v(8, 4) for _ in range(R)]
    EX = [v(4, 4) for _ in range(R)]
    QD = v(8, 4)
    AS = v(4, 4)
    ZP = v(2)
    vIDX = v()
    ACC = v(24, 4)
    W2B = v(32, 4)
    FR = [T, T + 4, T + 8, T + 12, v(4, 4)]
    vFRA, vFRB, vIDX2 = v(), v(), v()
    out_flags = cfg.get("k2_store", "sc1").replace("plain", "")
    prio_old = [int(c) for c in str(cfg.get("prio_old", "22110"))]
    prio_new = [int(c) for c in str(cfg.get("prio_new", "32211"))]
    later = []
    ENTRIES = ",".join(f"k2_first{p},k2_j1_{p},k2_j2_{p},k2_j3_{p}" for p in range(R))
    BOUNDS = ",".join(f"k2_bound{t}" for t in range(5))

    def E_(q, i):
        a(f"v_exp_f32 v{T+i}, v{Y[q]+i}")

    def mK(q, pn):
        a(f"v_mfma_f32_32x32x8bf16_1k {vr(Y[q],16)}, {vr(A3,2)}, {vr(EX[pn]+2,2)}, {vr(C,16)}")

    def mZ(q, pn):
        a(f"v_smfmac_f32_32x32x32_bf16 {vr(Y[q],16)}, {vr(AS,4)}, {vr(DATA[pn],8)}, v{vIDX}")

    def mQ(n):
        if n == 0:
            a(f"v_mfma_f32_32x32x8bf16_1k {vr(C,16)}, {vr(ZP,2)}, {vr(ZP,2)}, 0")
        else:
            a(f"v_smfmac_f32_32x32x32_bf16 {vr(C,16)}, {vr(AS,4)}, {vr(QD,8)}, v{vIDX}")

    def pk(d, x, y, z):
        return f"v_pk_fma_f32 {vr(d,2)}, {vr(x,2)}, {vr(y,2)}, {vr(z,2)}"

    def chain(q, h):
        return ([pk(NR+2*j, NR+2*j, T+8*h+2*j, NR+2*j) for j in range(4)]
                + [pk(NR+2*j, Y[q]+8*h+2*j, DR+2*j, NR+2*j) for j in range(4)]
                + [pk(DR+2*j, DR+2*j, T+8*h+2*j, DR+2*j) for j in range(4)])

    def chain_first(q):
        return ([f"v_pk_add_f32 {vr(DR+2*j,2)}, {vr(T+2*j,2)}, 1.0 op_sel_hi:[1,0]" for j in range(4)]
                + [pk(NR+2*j, Y[q]+2*j, T+8+2*j, Y[q]+2*j) for j in range(4)]
                + [pk(NR+2*j, Y[q]+8+2*j, DR+2*j, NR+2*j) for j in range(4)]
                + [pk(DR+2*j, DR+2*j, T+8+2*j, DR+2*j) for j in range(4)])

    def exread(p, pn):
        a(f"ds_read_b128 {vr(EX[pn],4)}, v{vEXR} offset:{p*1024}")

    def gathers(pn, so=None):
        so = PSL if so is None else so
        for n in range(2):
            a(f"buffer_load_dwordx4 {vr(DATA[pn]+4*n,4)}, v{EX[pn]}, s[{PS}:{PS+3}], s{so} offen offset:{64*n} {cfg.get('gflag', '').replace('_', ' ')}")

    def qload():
        for n in range(2):
            a(f"buffer_load_dwordx4 {vr(QD+4*n,4)}, v{vQA}, s[{QS}:{QS+3}], s{QSO} offen offset:{64*n} {cfg.get('qflag', '').replace('_', ' ')}")

    def wrap(p):
        if p == R - 1:
            a(f"v_add_u32 v{vEXR}, {R*1024}, v{vEXR}")

    def pf_switch(pnext, ahead=1):
        a(f"""
        s_mov_b32 m0, s{PIDX}
        s_add_u32 s{PIDX}, s{PIDX}, 1
        s_movrels_b32 s{t1}, s{POF}
        s_movrels_b32 s{RP}, s{NT1}
        s_movrels_b32 s{PSL}, s{SLO}
        s_add_u32 s{t1}, s{t1}, {(1024*(ahead - pnext)) & 0xffffffff}
        s_add_u32 s{RP}, s{RP}, 1
        v_add_u32 v{vEXR}, s{t1}, v{vL16}
        """)
        if cfg.get("x_nogather"):
            a(f"s_mov_b32 s{PSL}, 0x7f000000")
        if cfg.get("x_oneslice"):
            a(f"s_and_b32 s{PSL}, s2, 7\ns_mul_i32 s{PSL}, s{PSL}, {SL}")

    def schedule():
        a(f"""
        s_min_u32 s{EV}, s{RP}, s{RC}
        s_sub_u32 s{RP}, s{RP}, s{EV}
        s_sub_u32 s{RC}, s{RC}, s{EV}
        s_cmp_eq_u32 s{RP}, 0
        s_cselect_b64 vcc, -1, 0
        s_sub_u32 s{EV}, s{EV}, 1
        """)

    def setaddr(reg, label):
        a(f"s_add_u32 s{reg}, s{SBASE}, {label}-k2_pcbase\ns_addc_u32 s{reg+1}, s{SBASE+1}, 0")

    def w2load(slices):
        for j, sl in enumerate(slices):
            a(f"s_add_u32 s{t1}, s{W2O}, {0x70000000 if cfg.get('x_now2') else 4096*sl}")
            for k in range(4):
                a(f"buffer_load_dwordx4 {vr(W2B+16*j+8*(k&1)+4*(k>>1),4)}, v{vL16}, s[{WSR}:{WSR+3}], s{t1} offen offset:{1024*k}")

    def step_read(st, buf):
        j, tt, ks = st
        if tt < 2:
            a(f"ds_read_b128 {vr(FR[buf],4)}, v{vFRA} offset:{tt*16*HS + ks*64 + j*128}")
            return 1
        for h in range(2):
            a(f"ds_read2_b32 {vr(FR[buf]+2*h,2)}, v{vFRB} offset0:{32*j + 4*h} offset1:{32*j + 4*h + 2}")
        return 2

    def step_mfma(st, buf, U):
        j, tt, ks = st
        r = ACC + 8 * tt + 4 * U
        if tt < 2:
            a(f"v_mfma_f32_16x16x32_bf16 {vr(r,4)}, {vr(FR[buf],4)}, {vr(W2B+16*j+8*U+4*ks,4)}, {vr(r,4)}")
        else:
            a(f"v_smfmac_f32_16x16x64_bf16 {vr(r,4)}, {vr(FR[buf],4)}, {vr(W2B+16*j+8*U,8)}, v{vIDX2}")

    def steps_by_slice(n):
        return [(j, tt, ks) for j in range(n) for tt, ks in ((0, 0), (1, 0), (0, 1), (1, 1), (2, 0))]

    NB = 5

    def first_reads(steps):
        for i in range(NB):
            step_read(steps[i], i)

    def gemm2_run(steps, fill=(), per=2, hook=None):
        fill = list(fill)
        order = []
        for i in range(NB):
            order += [i] * (1 if steps[i][1] < 2 else 2)
        waited = -1
        for i, st in enumerate(steps):
            pos = len(order) - 1 - order[::-1].index(i)
            if pos > waited:
                a(f"s_waitcnt lgkmcnt({len(order) - 1 - pos})")
                waited = pos
            for U in range(2):
                step_mfma(st, i % NB, U)
                if U == 1 and i + NB < len(steps):
                    order += [i + NB] * step_read(steps[i + NB], i % NB)
                for _ in range(per):
                    if fill:
                        x = fill.pop(0)
                        a(x)
                        if x.startswith("ds_"):
                            order.append(None)
            if hook:
                fill += hook(i)
        return fill

    def acc_init(DG=None):
        DG = Y[1] if DG is None else DG
        a(f"v_and_b32 v{vTMP}, 48, v{L}")
        for tt in range(3):
            a(f"ds_read_b128 {vr(DG+4*tt,4)}, v{vTMP} offset:{DEGF + 64*tt}")
        a(f"""
        s_mov_b32 s{t1}, {C_NLOG2E}
        v_lshlrev_b32 v{DG+12}, 16, v{vB2}
        v_and_b32 v{DG+13}, 0xffff0000, v{vB2}
        v_mul_f32 v{DG+12}, s{t1}, v{DG+12}
        v_mul_f32 v{DG+13}, s{t1}, v{DG+13}
        s_waitcnt lgkmcnt(0)
        """)
        for tt in range(3):
            for U in range(2):
                for r in range(4):
                    a(f"v_mul_f32 v{ACC+8*tt+4*U+r}, v{DG+4*tt+r}, v{DG+12+U}")

    def start_ops(t):
        o = []
        if t + 1 < 5:
            o += [f"s_lshr_b32 s{t3}, s{FL+t+1}, 16", f"v_add_u32 v{vA3A}, s{t3}, v{vA3B}"]
        o.append(f"v_lshrrev_b32 v{vDEG}, 16, v{INFO+t}")
        if t + 2 < 5:
            o.append(f"v_mad_u32_u16 v{vQA}, v{INFO+t+2}, s{S128}, v{vC16}")
        if G2[t]:
            d = (G2[t][0] - (G2[t-1][0] if G2[t-1] else 0)) * 128
            if d:
                o += [f"v_add_u32 v{vFRA}, {d}, v{vFRA}", f"v_add_u32 v{vFRB}, {d}, v{vFRB}"]
        o += [f"s_mov_b32 s{QSO}, s{SLO + min(t+2, 5)}",
              f"s_add_u32 s{SB}, s{SBASE}, k2_bound{t}-k2_pcbase",
              f"s_addc_u32 s{SB+1}, s{SBASE+1}, 0",
              f"s_lshl_b32 s{STEP}, s{NT1+t}, 1",
              f"s_and_b32 s{ODD}, s{FL+t}, 1",
              f"s_min_u32 s{EV}, s{RP}, s{NT1+t}",
              f"s_sub_u32 s{RP}, s{RP}, s{EV}",
              f"s_sub_u32 s{RC}, s{NT1+t}, s{EV}",
              f"s_cmp_eq_u32 s{RP}, 0",
              f"s_cselect_b64 vcc, -1, 0",
              f"s_sub_u32 s{EV}, s{EV}, 1"]
        return o

    def start_jump(t, loads):
        po, pn_ = prio_old[t], prio_new[t]
        change = t == 0 or (po, pn_) != (prio_old[t-1], prio_new[t-1])
        for j, sl in enumerate(loads):
            a(f"s_add_u32 s{t1+j}, s{W2O}, {0x70000000 if cfg.get('x_now2') else 4096*sl}")
        split = change and po != pn_
        a(f"s_cmp_lt_u32 s{S_WAVE}, 4" if split else f"s_bitcmp1_b32 s{FL+t}, 1")
        for j, sl in enumerate(loads):
            for k in range(4):
                a(f"buffer_load_dwordx4 {vr(W2B+16*j+8*(k&1)+4*(k>>1),4)}, v{vL16}, s[{WSR}:{WSR+3}], s{t1+j} offen offset:{1024*k} {cfg.get('wflag', '').replace('_', ' ')}")
        if change:
            a(f"s_setprio {po}")
        if split:
            a(f"s_cbranch_scc1 k2_prio{t}\ns_setprio {pn_}")
            a.label(f"k2_prio{t}")
            a(f"s_bitcmp1_b32 s{FL+t}, 1\ns_nop 1")
        a(f"s_cbranch_scc1 k2_rare\ns_setpc_b64 s[{SE}:{SE+1}] ;-> {ENTRIES}")

    pr = Prof(a, cfg, 1, 250)
    entry(a, "k2", pr)
    RAW = Y[0]
    HDR, A3G = RAW + 12, RAW + 14
    vRI, vL4, FST = C, C + 1, C + 4
    XT = [C + 8, C + 12]
    SEL0, SEL1, K0, K1_ = T, T + 1, T + 2, T + 3
    a(f"""
    s_mul_i32 s{MB}, s2, {MEMB}
    s_add_u32 s{MB}, s{MB}, {OFF_LIST}
    v_and_b32 v{vQA}, 60, v{L}
    v_lshlrev_b32 v{vQA}, 2, v{vQA}
    v_and_b32 v{vRI}, 28, v{L}
    v_lshlrev_b32 v{vA3B}, 3, v{L}
    v_lshlrev_b32 v{vL4}, 2, v{L}
    s_lshl_b32 s{t1}, s{S_WAVE}, 8
    s_add_u32 s{t3}, s{MB}, s{t1}
    s_add_u32 s{t4}, s{t3}, 4096
    """)
    def item_ids(t):
        a(f"""
        s_add_u32 s{t1}, s{S_WAVE}, {8*t}
        s_mul_i32 s{t2}, s{t1}, 13
        s_lshr_b32 s{t2}, s{t2}, 6
        s_mul_i32 s{SLO+t}, s{t2}, {SL}
        s_lshl_b32 s{FL+t}, s{t2}, 25
        s_mul_i32 s{t2}, s{t2}, 5
        s_sub_u32 s{POF+t}, s{t1}, s{t2}
        """)
    item_ids(0)
    a(f"""
    s_mul_i32 s{t1}, s2, 1280
    s_lshl_b32 s{t2}, s{POF}, 8
    s_add_u32 s{GS}, s{t1}, s{t2}
    s_add_u32 s{GS}, s{GS}, {OFF_FIRST}
    s_waitcnt lgkmcnt(0)
    """)
    if cfg.get("prof") == 7: pr.stamp(42)
    srd(a, WSR, S_WS, WS_USED)
    a(f"""
    buffer_load_dwordx4 {vr(FST,4)}, v{vQA}, s[{WSR}:{WSR+3}], s{GS} offen
    buffer_load_dword v{HDR}, v{vL4}, s[{WSR}:{WSR+3}], s{MB} offen
    buffer_load_dwordx4 {vr(RAW,4)}, v{vQA}, s[{WSR}:{WSR+3}], s{t3} offen offset:256
    buffer_load_dwordx4 {vr(RAW+4,4)}, v{vQA}, s[{WSR}:{WSR+3}], s{t3} offen offset:2304
    buffer_load_dwordx4 {vr(RAW+8,4)}, v{vQA}, s[{WSR}:{WSR+3}], s{t4} offen offset:256
    s_lshl_b32 s{t3}, s{S_WAVE}, 9
    s_add_u32 s{t2}, s{t3}, {OFF_A3T}
    buffer_load_dwordx2 {vr(A3G,2)}, v{vA3B}, s[{WSR}:{WSR+3}], s{t2} offen
    """)
    srd(a, X0, S_B2, 512)
    a(f"""
    s_lshl_b32 s{t2}, s{S_WAVE}, 6
    v_and_b32 v{vCOL}, 15, v{L}
    v_lshlrev_b32 v{vCOL}, 2, v{vCOL}
    v_add_u32 v{vCOL}, s{t2}, v{vCOL}
    buffer_load_dword v{vB2}, v{vCOL}, s[{X0}:{X0+3}], 0 offen
    """)
    if cfg.get("prof") == 7: pr.stamp(43)
    for t in range(1, 5):
        item_ids(t)
    srd(a, PS, S_WS, 8 * SL)
    srd(a, QS, S_WS, 8 * SL, off=OFF_Q)
    srd(a, OS, S_OUT, N * 512)
    a(f"""
    s_movk_i32 s{S128}, 128
    v_and_b32 v{K0}, 3, v{L}
    v_lshlrev_b32 v{vC16}, 4, v{K0}
    v_and_b32 v{SEL0}, 1, v{L}
    v_cmp_eq_u32 vcc, 0, v{SEL0}
    v_mov_b32 v{T+4}, 0x03020c0c
    v_mov_b32 v{T+5}, 0x0c0c0302
    v_mov_b32 v{T+6}, 0x0c0c0c0c
    v_cndmask_b32 v{T+4}, v{T+4}, v{T+5}, vcc
    v_cmp_gt_u32 vcc, 2, v{K0}
    s_mov_b32 s{QSO}, s{SLO}
    s_mov_b32 s{PSL}, {"0x7f000000" if cfg.get("x_nogather") else "s%d" % SLO}
    v_cndmask_b32 v{SEL0}, v{T+6}, v{T+4}, vcc
    v_cndmask_b32 v{SEL1}, v{T+4}, v{T+6}, vcc
    """)
    def consts():
        a(f"""
        s_lshl_b32 s{W2O}, s{S_WAVE}, 15
        s_add_u32 s{W2O}, s{W2O}, {OFF_W2F}
        v_lshlrev_b32 v{vL16}, 4, v{L}
        v_mov_b32 v{vONE}, 1
        v_add_u32 v{vA3B}, {A3L}, v{vA3B}
        v_add_u32 v{vA3A}, s{t3}, v{vA3B}
        v_lshlrev_b32 v{vDONE}, 2, v0
        v_mov_b32 v{vCHK}, 0
        ds_write_b32 v{vDONE}, v{vCHK} offset:2048
        v_add_u32 v{vDONE}, {DONE-256}, v{vL4}
        v_mul_u32_u24 v{vHW}, {HS//4}, v{vRI}
        v_add_u32 v{vHW}, v{vHW}, v{vC16}
        v_lshrrev_b32 v{K1_}, 5, v{L}
        v_lshl_add_u32 v{vHW}, v{K1_}, 3, v{vHW}
        v_add_u32 v{vHW}, {HB}, v{vHW}
        v_and_b32 v{vFRA}, 15, v{L}
        v_mul_u32_u24 v{vFRA}, {HS}, v{vFRA}
        v_and_b32 v{T+4}, 48, v{L}
        v_add_u32 v{vFRA}, v{vFRA}, v{T+4}
        v_add_u32 v{vFRA}, {HB}, v{vFRA}
        v_and_b32 v{vFRB}, 7, v{L}
        v_mul_u32_u24 v{vFRB}, {HS}, v{vFRB}
        v_lshl_add_u32 v{vFRB}, v{T+4}, 1, v{vFRB}
        v_bfe_u32 v{T+5}, v{L}, 3, 1
        v_lshl_add_u32 v{vFRB}, v{T+5}, 2, v{vFRB}
        v_add_u32 v{vFRB}, {HB + 32*HS}, v{vFRB}
        v_mul_u32_u24 v{vIDX2}, 0xaaaa, v{T+5}
        v_add_u32 v{vIDX2}, 0x4444, v{vIDX2}
        s_lshl_b32 s{t1}, s{S_WAVE}, 12
        s_add_u32 s{t1}, s{t1}, {EXP}
        v_add_u32 v{vTMP}, s{t1}, v{vL16}
        """)
        a(f"""
        v_bfe_u32 v{T+4}, v{L}, 3, 1
        v_cmp_eq_u32 vcc, v{T+4}, v{K1_}
        v_bfe_u32 v{T+5}, v{L}, 4, 1
        v_bfe_u32 v{T+6}, v{L}, 2, 1
        v_lshl_add_u32 v{T+5}, v{T+5}, 1, v{T+6}
        v_cndmask_b32 v{T+4}, 7, v{T+5}, vcc
        v_mov_b32 v{T+8}, 0x3f80
        v_mul_u32_u24 v{vIDX}, 0x5555, v{K0}
        v_mov_b32 v{ZP}, 0
        v_mov_b32 v{ZP+1}, 0
        """)
        for j in range(4):
            a(f"v_cmp_eq_u32 vcc, {j}, v{T+4}\ns_nop 1\nv_cndmask_b32 v{AS+j}, 0, v{T+8}, vcc")
        for t in range(5):
            a(f"""
            s_mul_i32 s{HWO+t}, s{POF+t}, {8*HS}
            s_lshr_b32 s{t2}, s{FL+t}, 18
            s_add_u32 s{HWO+t}, s{HWO+t}, s{t2}
            """)
        a(f"""
        s_mov_b32 s{NT1+5}, 1000
        s_mov_b32 s{POF+5}, {EXP}
        s_mov_b32 s{SLO+5}, 0x7f000000
        s_mov_b32 s{PIDX}, 0
        """)

    cpos = cfg.get("cpos", 1)
    if cpos == 0:
        consts()
    for t in range(5):
        a(f"s_lshl_b32 s{t1}, s{POF+t}, 5\nv_add_u32 v{INFO+t}, s{t1}, v{vRI}")
    a(f"s_getpc_b64 s[{SBASE}:{SBASE+1}]")
    a.label("k2_pcbase")
    a("s_waitcnt vmcnt(6)")
    for j in range(R):
        a(f"v_mad_u32_u16 v{EX[j]}, v{FST+j}, s{S128}, v{vC16}")
    gathers(0)
    nearly = 1
    a("s_waitcnt vmcnt(7)")
    for t in range(5):
        a(f"ds_bpermute_b32 v{INFO+t}, v{INFO+t}, v{HDR}")
    for g in range(6):
        a(f"v_readlane_b32 s{HD+g}, v{HDR}, {48+g}")
    a(f"""
    s_waitcnt lgkmcnt(4)
    v_mad_u32_u16 v{vQA}, v{INFO}, s{S128}, v{vC16}
    """)
    qload()
    if cpos == 1:
        consts()
    a(f"s_cmp_lg_u32 s{HD+5}, 0")
    pr.stamp(1)
    a(f"""
    s_cbranch_scc1 k2_slow_static
    s_and_b32 s{t1}, s{HD+2}, 0xff
    s_lshr_b32 s{t2}, s{HD+2}, 10
    s_add_u32 s{t4}, s{t1}, s{t2}
    s_add_u32 s{t4}, s{t4}, 1
    s_lshl_b32 s{GS}, s{t4}, 10
    s_lshl_b32 s{t1}, s{S_WAVE}, 2
    s_sub_u32 s{t4}, s{t4}, s{t1}
    """)
    for j in range(R):
        a(f"v_perm_b32 v{EX[j]+2}, v{FST+j}, v{FST+j}, v{SEL0}\nv_perm_b32 v{EX[j]+3}, v{FST+j}, v{FST+j}, v{SEL1}")
    a("s_waitcnt vmcnt(6)")
    pr.stamp(2)
    for i in range(12):
        e = XT[i % 2]
        tile = 32 * (i // 4) + i % 4
        if i == 8:
            a(f"v_add_u32 v{vTMP}, 65536, v{vTMP}")
        a(f"""
        s_cmp_le_i32 s{t4}, {tile}
        v_mad_u32_u16 v{e}, v{RAW+i}, s{S128}, v{vC16}
        v_perm_b32 v{e+2}, v{RAW+i}, v{RAW+i}, v{SEL0}
        v_perm_b32 v{e+3}, v{RAW+i}, v{RAW+i}, v{SEL1}
        s_cbranch_scc1 k2_expanded
        ds_write_b128 v{vTMP}, {vr(e,4)} offset:{(tile % 64)*1024}
        """)
    a.label("k2_expanded")
    a(f"""
    s_cmp_lg_u32 s{S_WAVE}, 0
    s_cbranch_scc1 k2_nodup
    v_add_u32 v{vTMP}, s{GS}, v{vL16}
    ds_write_b128 v{vTMP}, {vr(EX[0],4)} offset:{EXP}
    """)
    a.label("k2_nodup")
    if cfg.get("prof") == 7: pr.stamp(44)
    a(f"""
    s_waitcnt vmcnt(5)
    v_and_b32 v{T+4}, 0xffff, v{HDR}
    v_lshlrev_b32 v{T+4}, 9, v{T+4}
    ds_write_b32 v{vL4}, v{T+4} offset:{OUTOFF}
    v_lshrrev_b32 v{T+5}, 16, v{HDR}
    v_cvt_f32_u32 v{T+5}, v{T+5}
    ds_write_b32 v{vL4}, v{T+5} offset:{DEGF}
    ds_write_b64 v{vA3A}, {vr(A3G,2)}
    """)
    for t in range(5):
        a(f"""
        s_mov_b32 m0, s{POF+t}
        s_nop 0
        s_movrels_b32 s{t1}, s{HD}
        s_and_b32 s{NT1+t}, s{t1}, 0xff
        s_bfe_u32 s{t2}, s{t1}, 0x20008
        s_or_b32 s{FL+t}, s{FL+t}, s{t2}
        s_andn2_b32 s{t1}, s{t1}, 0x3ff
        s_add_u32 s{POF+t}, s{t1}, {EXP}
        """)
    pf_switch(0, 0)
    late_before = cfg.get("latepre", R)
    lag = cfg.get("lag", 0)
    lagcmp = f"s_cmp_{'lt' if cfg.get('lagold', 1) else 'ge'}_u32 s{S_WAVE}, 4"
    for j in range(nearly, late_before):
        if lag and j == R - lag:
            a(f"{lagcmp}\ns_cbranch_scc1 k2_lag_a")
        gathers(j)
    if lag:
        a.label("k2_lag_a")
    if cfg.get("prof") == 7: pr.stamp(45)
    a(f"s_cmp_lt_u32 s{RP}, {R+1}\ns_waitcnt lgkmcnt(0)\ns_barrier")
    pr.stamp(3)
    if cfg.get("x_half"):
        a(f"s_cmp_ge_u32 s{S_WAVE}, 4\ns_cbranch_scc1 k2_exit\ns_cmp_lt_u32 s{RP}, {R+1}")
    a("s_cbranch_scc1 k2_short_first")
    for j in range(max(nearly, late_before), R):
        gathers(j)
    if lag:
        a(f"{lagcmp}\ns_cbranch_scc0 k2_lag_b\ns_waitcnt vmcnt({2*(R - lag - 1)})")
        for j in range(R - lag, R):
            gathers(j)
        a.label("k2_lag_b")
    wrap(R - 1)
    a(f"s_sub_u32 s{RP}, s{RP}, {R}")
    a.label("k2_primed")
    a(f"s_lshr_b32 s{t1}, s{FL}, 16\nv_add_u32 v{vA3A}, s{t1}, v{vA3B}\nds_read_b64 {vr(A3,2)}, v{vA3A}")

    def short_first():
        a.label("k2_short_first")
        for p in range(R):
            exread(p, p)
            a("s_waitcnt lgkmcnt(0)")
            gathers(p)
            wrap(p)
            a(f"s_sub_u32 s{RP}, s{RP}, 1\ns_cmp_lg_u32 s{RP}, 0\ns_cbranch_scc1 k2_pro_{p}")
            pf_switch((p + 1) % R, 0)
            a.label(f"k2_pro_{p}")
        a("s_branch k2_primed")
    later.append(short_first)
    mQ(0)
    a(f"s_waitcnt vmcnt({2*R-2})")
    mQ(1)
    if cfg.get("acc_mode", 0) == 0:
        acc_init()
    if cfg.get("prof") == 7: pr.stamp(46)
    a(f"""
    v_mad_u32_u16 v{vQA}, v{INFO+1}, s{S128}, v{vC16}
    s_mov_b32 s{QSO}, s{SLO+1}
    s_waitcnt lgkmcnt(0)
    """)
    mK(0, 0)
    qload()
    exread(0, 0)
    a(f"v_add_u32 v{vEXR}, 1024, v{vEXR}")
    for k in range(4):
        a(f"buffer_load_dword v{W2B+k}, v{vL16}, s[{PS}:{PS+3}], s{SLO+5} offen")
    setaddr(SE, "k2_first0")
    a(f"s_waitcnt vmcnt({2*R+4})")
    mZ(0, 0)
    pr.stamp(4)
    if cfg.get("prof", 0) == 3:
        pr.cyc(40)
    a("\n".join(start_ops(0)))
    start_jump(0, [])

    ne1 = cfg.get("ne1", 5)
    ne2 = cfg.get("ne2", 3)

    def block(p, wait, ops, split):
        q, pn = p % 2, (p + 1) % R
        mK(q ^ 1, pn)
        for i in range(ne1):
            E_(q, i)
        a(f"s_waitcnt vmcnt({wait}) lgkmcnt(0)")
        mZ(q ^ 1, pn)
        gathers(p)
        exread(p, pn)
        for i in range(ne1, ne1 + ne2):
            E_(q, i)
        a("\n".join(ops[:split]))
        wrap(p)
        for i in range(ne1 + ne2, 16):
            E_(q, i)
        a("\n".join(ops[split:-3]))
        a(f"s_sub_u32 s{EV}, s{EV}, 1")
        a("\n".join(ops[-3:]))

    a(".p2align 6")
    for p in range(R):
        q, pn = p % 2, (p + 1) % R
        a.label(f"k2_normal{p}")
        block(p, 2 * R - 4, chain(q, 0) + chain(q, 1), cfg.get("split", 8))
        a(f"s_cbranch_scc1 k2_event{pn}" if pn else "s_cbranch_scc0 k2_normal0")

    for p in range(R):
        q, pn = p % 2, (p + 1) % R
        a.label(f"k2_event{p}")
        a(f"s_cbranch_vccnz k2_switch{p}")
        a.label(f"k2_last{p}")
        mQ(0)
        a(f"""
        ds_read_b64 {vr(A3,2)}, v{vA3A}
        ds_read_b32 v{vPOLL}, v{vDONE}
        """)
        for i in range(4):
            E_(q, i)
        a(f"s_waitcnt vmcnt({2*R-4}) lgkmcnt(2)")
        mQ(1)
        gathers(p)
        qload()
        a(f"s_cmp_lg_u32 s{ODD}, 0")
        for i in range(4, 8):
            E_(q, i)
        a(f"s_cbranch_scc1 k2_lastodd{p}")
        fin = f"s_cbranch_scc1 k2_lswitch{p}\ns_setpc_b64 s[{SB}:{SB+1}] ;-> {BOUNDS}"

        a("s_waitcnt lgkmcnt(0)")
        mK(q ^ 1, pn)
        exread(p, pn)
        for i in range(8, 13):
            E_(q, i)
        wrap(p)
        a(f"v_cmpx_lt_u32 vcc, s{STEP}, v{vDEG}")
        c0, c1 = chain(q, 0), chain(q, 1)
        a("\n".join(c0[:4]))
        a(f"s_add_u32 s{STEP}, s{STEP}, 1")
        a("\n".join(c0[4:]))
        for i in range(13, 16):
            E_(q, i)
        setaddr(SE, f"k2_first{pn}")
        a(f"v_cmpx_lt_u32 vcc, s{STEP}, v{vDEG}")
        a("\n".join(c1[:4]))
        a(f"s_sub_u32 s{RP}, s{RP}, 1")
        a("\n".join(c1[4:8]))
        a(f"s_cmp_eq_u32 s{RP}, 0")
        a("\n".join(c1[8:]))
        a("s_mov_b64 exec, -1")
        mZ(q ^ 1, pn)
        first_reads(steps_by_slice(1))
        for i in range(8):
            a(f"v_rcp_f32 v{RCP+i}, v{DR+i}")
        a(fin)
        a.label(f"k2_lastodd{p}")
        a(f"v_cmpx_lt_u32 vcc, s{STEP}, v{vDEG}")
        a("\n".join(c0[:4]))
        setaddr(SE, f"k2_first{pn}")
        a("\n".join(c0[4:8]))
        a(f"s_sub_u32 s{RP}, s{RP}, 1\ns_cmp_eq_u32 s{RP}, 0")
        a("\n".join(c0[8:]))
        a("s_mov_b64 exec, -1\ns_waitcnt lgkmcnt(0)")
        mK(q ^ 1, pn)
        exread(p, pn)
        for i in range(4):
            a(f"v_rcp_f32 v{RCP+i}, v{DR+i}")
        mZ(q ^ 1, pn)
        first_reads(steps_by_slice(1))
        wrap(p)
        for i in range(4, 8):
            a(f"v_rcp_f32 v{RCP+i}, v{DR+i}")
        a(fin)

    for p in range(R):
        q, pn = p % 2, (p + 1) % R
        a.label(f"k2_j3_{p}")
        a(f"s_branch k2_firstg{p}")
        a.label(f"k2_j2_{p}")
        a(f"s_branch k2_last{p}")
        a.label(f"k2_j1_{p}")
        a(f"s_branch k2_normal{p}")
        a.label(f"k2_first{p}")
        block(p, 2 * R + 2, chain_first(q), 4)
        pp = pn
        for k in range(cfg.get("nrel", 2)):
            a(f"s_cbranch_scc1 k2_event{pp}")
            a.label(f"k2_rel{k}_{pp}")
            block(pp, 2 * R + 2, chain(pp % 2, 0) + chain(pp % 2, 1), cfg.get("split", 8))
            pp = (pp + 1) % R
        a(f"s_cbranch_scc0 k2_normal{pp}\ns_branch k2_event{pp}")
        a.label(f"k2_switch{p}")
        pf_switch(p)
        a(f"s_cmp_eq_u32 s{RC}, 0\ns_cbranch_scc1 k2_last{p}")
        schedule()
        a(f"s_branch k2_normal{p}")
        a.label(f"k2_lswitch{p}")
        pf_switch(pn)
        a(f"s_setpc_b64 s[{SB}:{SB+1}] ;-> {BOUNDS}")

    for t in range(5):
        sl = [] if cfg.get("x_nogemm2") else G2[t]
        n = 6 * len(sl)
        a.label(f"k2_bound{t}")
        if cfg.get("prof", 0) > 1:
            pr.cyc(8 + t)
        fill = []
        for j in range(8):
            fill.append(f"v_maximum3_f32 v{vCHK}, v{vCHK}, v{DR+j}, abs(v{NR+j})")
        if n:
            for j in range(8):
                fill.append(f"v_mul_f32 v{NR+j}, v{NR+j}, v{RCP+j}")
        else:
            for j in range(4):
                fill.append(f"v_pk_mul_f32 {vr(NR+2*j,2)}, {vr(NR+2*j,2)}, {vr(RCP+2*j,2)}")
        fill.append(f"v_add_u32 v{vTMP}, s{HWO+t}, v{vHW}")
        for j in range(4):
            fill.append(f"v_cvt_pk_bf16_f32 v{NR+j}, v{NR+2*j}, v{NR+2*j+1}")
        fill += [f"v_add_u32 v{vDONE}, 256, v{vDONE}",
                 f"ds_write_b64 v{vTMP}, {vr(NR,2)}",
                 f"ds_write_b64 v{vTMP}, {vr(NR+2,2)} offset:64",
                 f"ds_add_u32 v{vDONE}, v{vONE}"]
        if n:
            a(f"v_readfirstlane_b32 s{t1}, v{vPOLL}")
            a(fill.pop(0))
            a(f"s_cmp_lt_u32 s{t1}, 8")
            for _ in range(3):
                a(fill.pop(0))
            a(f"s_cbranch_scc1 k2_poll{t}")
            a.label(f"k2_polled{t}")

            def emit(t=t):
                a.label(f"k2_poll{t}")
                a(f"s_mov_b32 s{t2}, 0")
                a.label(f"k2_pollagain{t}")
                a(f"""
                ds_read_b32 v{vPOLL}, v{vDONE}
                s_add_u32 s{t2}, s{t2}, 1
                s_waitcnt lgkmcnt(0)
                v_readfirstlane_b32 s{t1}, v{vPOLL}
                s_cmp_ge_u32 s{t1}, 8
                s_cselect_b32 s{t2}, 0x200000, s{t2}
                s_cmp_lt_u32 s{t2}, 0x200000
                s_cbranch_scc1 k2_pollagain{t}
                """)
                first_reads(steps_by_slice(1))
                a(f"s_branch k2_polled{t}")
            later.append(emit)
        tail_ops = start_ops(t + 1) if t < 4 else []
        late = [x for x in tail_ops if f"v{vFRA}," in x or f"v{vFRB}," in x]
        fill += [x for x in tail_ops if x not in late]
        if n:
            a("\n".join(gemm2_run(steps_by_slice(len(sl)), fill, cfg.get("per", 2))))
        else:
            a("\n".join(fill))
            a("s_waitcnt lgkmcnt(3)")
            if t == 0 and cfg.get("acc_mode", 0) == 1:
                acc_init(T)
        a("\n".join(late))
        if cfg.get("prof", 0) > 1:
            pr.cyc(24 + t)
        if t < 4:
            start_jump(t + 1, G2[t + 1])
        else:
            w2load(G2[t + 1])

    OO = Y[0]

    def out_addr_reads():
        a(f"""
        v_and_b32 v{vTMP}, 48, v{L}
        ds_read_b128 {vr(OO,4)}, v{vTMP} offset:{OUTOFF}
        ds_read_b128 {vr(OO+4,4)}, v{vTMP} offset:{OUTOFF + 64}
        v_and_b32 v{vTMP}, 16, v{L}
        v_lshrrev_b32 v{OO+10}, 5, v{L}
        v_lshl_add_u32 v{vTMP}, v{OO+10}, 3, v{vTMP}
        ds_read_b64 {vr(OO+8,2)}, v{vTMP} offset:{OUTOFF + 128}
        """)

    def out_ops(tt):
        o = []
        store = lambda x, k: f"buffer_store_dword v{x}, v{OO+k}, s[{OS}:{OS+3}], 0 offen {out_flags}"
        if tt < 2:
            for r in range(4):
                x0, x1 = ACC + 8 * tt + r, ACC + 8 * tt + 4 + r
                o += [f"v_mul_f32 v{x0}, s{t2}, v{x0}", f"v_mul_f32 v{x1}, s{t2}, v{x1}", f"v_cvt_pk_bf16_f32 v{x0}, v{x0}, v{x1}"]
                if r:
                    o.append(store(x0 - 1, 4 * tt + r - 1))
            o.append(store(ACC + 8 * tt + 3, 4 * tt + 3))
            return o
        x = ACC + 16
        o += [f"v_permlane32_swap_b32 v{x+r}, v{x+4+r}" for r in range(4)]
        o += [f"v_add_f32 v{x+r}, v{x+r}, v{x+4+r}" for r in range(4)]
        o += [f"v_mul_f32 v{x+r}, s{t2}, v{x+r}" for r in range(4)]
        o += ["s_nop 0", f"v_permlane32_swap_b32 v{x}, v{x+2}", f"v_permlane32_swap_b32 v{x+1}, v{x+3}"]
        o += [f"v_cvt_pk_bf16_f32 v{x}, v{x}, v{x+2}", f"v_cvt_pk_bf16_f32 v{x+1}, v{x+1}, v{x+3}", store(x, 8), store(x + 1, 9)]
        return o

    a(f"v_cmp_ngt_f32 vcc, 0x7b800000, v{vCHK}")
    out_addr_reads()
    a(f"""
    v_add_u32 v{vFRA}, {(G2[5][0] - G2[4][0])*128}, v{vFRA}
    v_add_u32 v{vFRB}, {(G2[5][0] - G2[4][0])*128}, v{vFRB}
    v_mov_b32 v{vTMP}, {FLAG}
    s_cbranch_vccz k2_tail_ok
    ds_write_b32 v{vTMP}, v{vONE}
    """)
    a.label("k2_tail_ok")
    a("s_waitcnt lgkmcnt(0)")
    for k in range(10):
        a(f"v_add_u32 v{OO+k}, v{OO+k}, v{vCOL}")
    seq = [(j, 2, 0) for j in range(2)] + [(j, tt, ks) for tt in range(2) for j in range(2) for ks in range(2)]
    a(f"s_mov_b32 s{t2}, {C_NLN2}\ns_barrier\nds_read_b32 v{vPOLL}, v{vTMP}")
    first_reads(seq)
    pr.stamp(5)
    if cfg.get("prof", 0) == 3:
        pr.cyc(41)
    a(f"""
    s_waitcnt lgkmcnt(7)
    v_readfirstlane_b32 s{t1}, v{vPOLL}
    s_cmp_lg_u32 s{t1}, 0
    s_waitcnt vmcnt(0)
    s_cbranch_scc1 k2_slow
    """)
    rest = gemm2_run(seq, [], 4, lambda i: out_ops(2) if i == 3 else out_ops(0) if i == 7 else [])
    pr.stamp(6)
    a("\n".join(rest))
    a("s_nop 7")
    a("\n".join(out_ops(1)))
    a.label("k2_end")
    pr.finish(7)
    a("s_endpgm")

    a.label("k2_rare")
    a(f"""
    v_sub_u32 v{vTMP}, v{vDEG}, s{STEP}
    v_min_i32 v{vTMP}, 0, v{vTMP}
    v_cvt_f32_i32 v{vTMP}, v{vTMP}
    s_cmp_eq_u32 s{STEP}, 0
    s_cselect_b32 s{t1}, 8, 4
    s_cmp_ge_u32 s{STEP}, {2*(R-2)}
    s_cselect_b32 s{t1}, 12, s{t1}
    """)
    for j in range(8):
        a(f"v_exp_f32 v{DR+j}, v{C+j}\nv_mul_f32 v{NR+j}, v{vTMP}, v{C+j}")
    a("s_cbranch_scc1 k2_rare_long\ns_waitcnt vmcnt(0)")
    a.label("k2_rare_long")
    a(f"s_sub_u32 s{SE}, s{SE}, s{t1}\ns_subb_u32 s{SE+1}, s{SE+1}, 0")
    for j in range(4):
        a(f"v_pk_add_f32 {vr(DR+2*j,2)}, {vr(DR+2*j,2)}, 1.0 op_sel_hi:[1,0]")
    a(f"s_setpc_b64 s[{SE}:{SE+1}] ;-> {ENTRIES}")
    for p in range(R):
        q, pn = p % 2, (p + 1) % R
        a.label(f"k2_firstg{p}")
        block(p, 2 * R + 2, chain(q, 0) + chain(q, 1), cfg.get("split", 8))
        a(f"s_cbranch_scc0 k2_{'rel0_' if cfg.get('nrel', 2) else 'normal'}{pn}\ns_branch k2_event{pn}")
    for emit in later:
        emit()

    POOL0, BASE = HD, HD + 1
    vL4, vPO, vD, vS_, vE, vRow, vAA = (Y[0] + i for i in range(7))
    WV = Y[1]
    PD, QV, YY = DATA[0], DATA[0] + 4, DATA[1]
    a.label("k2_slow_static")
    a(f"""
    s_waitcnt vmcnt(0)
    s_lshr_b32 s{t1}, s2, 3
    s_mul_i32 s{t1}, s{t1}, 313
    s_and_b32 s{t2}, s2, 7
    s_mul_i32 s{t2}, s{t2}, 40
    s_add_u32 s{t3}, s{t1}, 313
    s_min_u32 s{t3}, s{t3}, {N}
    s_add_u32 s{t1}, s{t1}, s{t2}
    s_add_u32 s{t2}, s{t1}, 40
    s_min_u32 s{t3}, s{t3}, s{t2}
    v_add_u32 v{T}, s{t1}, v{L}
    v_cmp_gt_u32 vcc, s{t3}, v{T}
    v_mov_b32 v{T+1}, {N}
    v_lshlrev_b32 v{T+2}, 2, v{L}
    v_cndmask_b32 v{T}, v{T+1}, v{T}, vcc
    v_lshlrev_b32 v{T}, 9, v{T}
    ds_write_b32 v{T+2}, v{T} offset:{OUTOFF}
    """)
    a("s_branch k2_slow_go")
    a.label("k2_slow")
    a(f"v_subrev_u32 v{vFRA}, {G2[5][0]*128}, v{vFRA}\nv_subrev_u32 v{vFRB}, {G2[5][0]*128}, v{vFRB}")
    a.label("k2_slow_go")
    a(f"""
    s_setprio 0
    s_waitcnt vmcnt(0) lgkmcnt(0)
    s_load_dwordx16 s[4:19], s[0:1], 0
    s_waitcnt lgkmcnt(0)
    s_barrier
    s_lshr_b32 s{POOL0}, s2, 3
    s_mul_i32 s{POOL0}, s{POOL0}, 313
    v_lshlrev_b32 v{vL4}, 2, v{L}
    v_lshlrev_b32 v{T}, 2, v0
    v_lshlrev_b32 v{T+1}, 4, v0
    v_mov_b32 v{T+2}, -1
    v_mov_b32 v{T+4}, 0
    v_mov_b32 v{T+5}, 0
    v_mov_b32 v{T+6}, 0
    v_mov_b32 v{T+7}, 0
    v_cmp_gt_u32 vcc, 320, v0
    s_nop 1
    v_cndmask_b32 v{T+2}, 0, v{T+2}, vcc
    ds_write_b32 v{T}, v{T+2} offset:{MAP}
    v_add_u32 v{T+1}, {EXP}, v{T+1}
    """)
    for i in range(10):
        if i == 8:
            a(f"v_add_u32 v{T+1}, 65536, v{T+1}")
        a(f"ds_write_b128 v{T+1}, {vr(T+4,4)} offset:{(i % 8)*8192}")
    srd(a, X0, S_W1, 513 * 1024)
    a(f"""
    v_lshrrev_b32 v{T}, 3, v{L}
    v_and_b32 v{T+2}, 7, v{L}
    s_mov_b32 s{t1}, {SL}
    v_mul_lo_u32 v{vPO}, v{T}, s{t1}
    v_lshl_add_u32 v{vPO}, v{T+2}, 4, v{vPO}
    v_lshlrev_b32 v{T}, 7, v{T}
    v_lshl_add_u32 v{T}, v{T+2}, 2, v{T}
    s_mov_b32 s{t1}, {512*1024}
    """)
    for j in range(8):
        a(f"buffer_load_ushort v{WV+j}, v{T}, s[{X0}:{X0+3}], s{t1} offen offset:{(16*(j & 3) + (j >> 2))*2}")
    a(f"""
    s_waitcnt lgkmcnt(0)
    s_barrier
    ds_read_b32 v{T}, v{vL4} offset:{OUTOFF}
    s_waitcnt lgkmcnt(0)
    v_lshrrev_b32 v{T}, 9, v{T}
    v_cmp_gt_u32 vcc, {N}, v{T}
    v_cmp_gt_u32 s[{SX}:{SX+1}], 40, v{L}
    v_subrev_u32 v{T}, s{POOL0}, v{T}
    v_lshlrev_b32 v{T}, 2, v{T}
    s_and_b64 exec, vcc, s[{SX}:{SX+1}]
    ds_write_b32 v{T}, v{L} offset:{MAP}
    s_mov_b64 exec, -1
    s_mov_b32 s{t1}, {C_NLOG2E}
    s_waitcnt vmcnt(0)
    """)
    for j in range(8):
        a(f"v_lshlrev_b32 v{WV+j}, 16, v{WV+j}\nv_mul_f32 v{WV+j}, s{t1}, v{WV+j}")
    srd(a, X0, S_DST, E * 4)
    srd(a, X1, S_SRC, E * 4)
    srd(a, X2, S_E, E * 2)
    a(f"""
    s_lshl_b32 s{BASE}, s{S_WAVE}, 6
    v_lshlrev_b32 v{T+1}, 1, v{L}
    s_waitcnt lgkmcnt(0)
    s_barrier
    """)
    a.label("k2_slow_scan")
    a(f"""
    s_lshl_b32 s{t1}, s{BASE}, 2
    s_lshl_b32 s{t2}, s{BASE}, 1
    buffer_load_dword v{vD}, v{vL4}, s[{X0}:{X0+3}], s{t1} offen
    buffer_load_dword v{vS_}, v{vL4}, s[{X1}:{X1+3}], s{t1} offen
    buffer_load_ushort v{vE}, v{T+1}, s[{X2}:{X2+3}], s{t2} offen
    s_waitcnt vmcnt(0)
    v_subrev_u32 v{vRow}, s{POOL0}, v{vD}
    v_min_u32 v{vRow}, 319, v{vRow}
    v_lshlrev_b32 v{vRow}, 2, v{vRow}
    ds_read_b32 v{vRow}, v{vRow} offset:{MAP}
    v_lshlrev_b32 v{vE}, 16, v{vE}
    s_waitcnt lgkmcnt(0)
    v_cmp_le_i32 s[{SX}:{SX+1}], 0, v{vRow}
    s_nop 3
    """)
    a.label("k2_slow_edge")
    a(f"""
    s_cmp_eq_u64 s[{SX}:{SX+1}], 0
    s_cbranch_scc1 k2_slow_next
    s_ff1_i32_b64 s{t1}, s[{SX}:{SX+1}]
    s_bitset0_b64 s[{SX}:{SX+1}], s{t1}
    v_readlane_b32 s{t2}, v{vS_}, s{t1}
    v_readlane_b32 s{t3}, v{vD}, s{t1}
    v_readlane_b32 s{t4}, v{vE}, s{t1}
    v_readlane_b32 s{t1}, v{vRow}, s{t1}
    s_lshl_b32 s{t2}, s{t2}, 7
    s_lshl_b32 s{t3}, s{t3}, 7
    s_nop 3
    buffer_load_dwordx4 {vr(PD,4)}, v{vPO}, s[{PS}:{PS+3}], s{t2} offen
    buffer_load_dwordx4 {vr(QV,4)}, v{vPO}, s[{QS}:{QS+3}], s{t3} offen
    s_lshl_b32 s{t2}, s{t1}, 11
    s_add_u32 s{t2}, s{t2}, {EXP}
    v_add_u32 v{vAA}, s{t2}, v{vL4}
    s_lshl_b32 s{t1}, s{t1}, 2
    v_mov_b32 v{T+2}, s{t1}
    s_mov_b64 exec, 1
    ds_add_u32 v{T+2}, v{vONE} offset:{DEGC}
    s_mov_b64 exec, -1
    s_waitcnt vmcnt(0)
    """)
    for j in range(8):
        if j % 2 == 0:
            a(f"v_lshlrev_b32 v{T+4}, 16, v{PD+j//2}\nv_lshlrev_b32 v{T+5}, 16, v{QV+j//2}")
        else:
            a(f"v_and_b32 v{T+4}, 0xffff0000, v{PD+j//2}\nv_and_b32 v{T+5}, 0xffff0000, v{QV+j//2}")
        a(f"""
        v_fma_f32 v{T+5}, s{t4}, v{WV+j}, v{T+5}
        v_add_f32 v{T+4}, v{T+4}, v{T+5}
        v_exp_f32 v{T+5}, v{T+4}
        s_nop 0
        v_add_f32 v{T+5}, 1.0, v{T+5}
        v_rcp_f32 v{T+5}, v{T+5}
        s_nop 0
        v_mul_f32 v{YY+j}, v{T+4}, v{T+5}
        ds_add_f32 v{vAA}, v{YY+j} offset:{256*j}
        """)
    a("s_branch k2_slow_edge")
    a.label("k2_slow_next")
    a(f"""
    s_add_u32 s{BASE}, s{BASE}, 512
    s_cmp_lt_u32 s{BASE}, {E}
    s_cbranch_scc1 k2_slow_scan
    s_waitcnt lgkmcnt(0)
    s_barrier
    ds_read_b32 v{T}, v{vL4} offset:{DEGC}
    s_waitcnt lgkmcnt(0)
    v_cvt_f32_u32 v{T}, v{T}
    ds_write_b32 v{vL4}, v{T} offset:{DEGF}
    """)
    for i in range(5):
        a(f"""
        s_add_u32 s{t1}, s{S_WAVE}, {8*i}
        s_lshl_b32 s{t2}, s{t1}, 11
        s_add_u32 s{t2}, s{t2}, {EXP}
        v_add_u32 v{vAA}, s{t2}, v{vL4}
        s_mul_i32 s{t1}, s{t1}, {HS}
        s_add_u32 s{t1}, s{t1}, {HB}
        v_add_u32 v{T+2}, s{t1}, v{vL16}
        """)
        for j in range(8):
            a(f"ds_read_b32 v{YY+j}, v{vAA} offset:{256*j}")
        a("s_waitcnt lgkmcnt(0)")
        for j in range(4):
            a(f"v_cvt_pk_bf16_f32 v{T+4+j}, v{YY+2*j}, v{YY+2*j+1}")
        a(f"ds_write_b128 v{T+2}, {vr(T+4,4)}")
    a("s_waitcnt lgkmcnt(0)\ns_barrier")
    acc_init()
    out_addr_reads()
    a(f"s_waitcnt lgkmcnt(0)\ns_mov_b32 s{GS}, 0")
    for k in range(10):
        a(f"v_add_u32 v{OO+k}, v{OO+k}, v{vCOL}")
    a.label("k2_slow_gemm")
    w2load([0, 1])
    first_reads(steps_by_slice(2))
    a("s_waitcnt vmcnt(0)")
    gemm2_run(steps_by_slice(2))
    a(f"""
    v_add_u32 v{vFRA}, 256, v{vFRA}
    v_add_u32 v{vFRB}, 256, v{vFRB}
    s_add_u32 s{W2O}, s{W2O}, 8192
    s_add_u32 s{GS}, s{GS}, 1
    s_cmp_lt_u32 s{GS}, 4
    s_cbranch_scc1 k2_slow_gemm
    s_mov_b32 s{t2}, {C_NLN2}
    s_nop 7
    """)
    for tt in range(3):
        a("\n".join(out_ops(tt)))
    a("s_branch k2_end")
    a.label("k2_exit")
    a("s_endpgm")
    return a, (256 if pr.on else v.n)
```

```python
N = 10000
E = 160000
import os
SLROWS = int(os.environ.get('SLROWS', 10240))
SL = SLROWS * 128
OFF_P = 0
OFF_Q = 8 * SL
OFF_W2F = 16 * SL
OFF_A3T = OFF_W2F + 262144
OFF_SEG = OFF_A3T + 4096
MEMB = 6144
MAXT = 80
OFF_LIST = OFF_SEG + 32 * 57344
OFF_FIRST = OFF_LIST + 256 * MEMB
WS_USED = OFF_FIRST + 256 * 1280
C_NLOG2E = "0xbfb8aa3b"
C_NLN2 = "0xbf317218"
OFF_PROF = 32 << 20
```

```python
from asmlib import Asm
from layout import *

def report(cfg):
    a = Asm()
    a(f"""
    s_cmp_ge_u32 s2, 1
    s_cbranch_scc1 rp_exit
    s_load_dwordx4 s[20:23], s[0:1], 64
    s_load_dwordx2 s[24:25], s[0:1], 80
    v_lshlrev_b32 v1, 11, v0
    v_lshlrev_b32 v20, 2, v0
    v_mov_b32 v21, 0
    v_mov_b32 v22, -1
    v_cmp_gt_u32 vcc, 16, v0
    s_waitcnt lgkmcnt(0)
    s_mov_b32 s28, s24
    s_mov_b32 s29, s25
    s_mov_b32 s30, {OFF_PROF + (2 << 20)}
    s_mov_b32 s31, 0x00020000
    s_mov_b32 s32, s22
    s_mov_b32 s33, s23
    s_mov_b32 s34, 256
    s_mov_b32 s35, 0x00020000
    v_cndmask_b32 v23, v21, v22, vcc
    ds_write_b32 v20, v23
    s_waitcnt lgkmcnt(0)
    s_barrier
    """)
    items = cfg["items"]
    a("v_lshrrev_b32 v2, 3, v0")
    for n, (k, role, st, op) in enumerate(items):
        a(f"s_mov_b32 s3, {OFF_PROF + k * (1 << 19) + st * 4}")
        cond = {"g": "v_cmp_le_u32 vcc, 5, v2", "s": "v_cmp_gt_u32 vcc, 4, v2", "a": "v_cmp_le_u32 vcc, 0, v2"}[role]
        a(cond)
        a("s_and_saveexec_b64 s[36:37], vcc")
        a(f"s_cbranch_execz rp_skip{n}")
        for w in range(8):
            a(f"buffer_load_dword v{4+w}, v1, s[28:31], s3 offen offset:{256*w}")
        a("s_waitcnt vmcnt(0)")
        for w in range(1, 8):
            a(f"v_{op}_u32 v4, v4, v{4+w}")
        a(f"v_mov_b32 v3, {(n if op == 'min' else 16 + n) * 4}")
        a(f"ds_{op}_u32 v3, v4")
        a.label(f"rp_skip{n}")
        a("s_mov_b64 exec, s[36:37]")
    a("""
    s_waitcnt lgkmcnt(0)
    s_barrier
    ds_read_b32 v4, v20
    ds_read_b32 v5, v20 offset:64
    ds_read_b32 v6, v21
    s_waitcnt lgkmcnt(0)
    v_cmp_eq_u32 vcc, -1, v4
    s_nop 1
    v_cndmask_b32 v4, v4, v5, vcc
    v_sub_u32 v4, v4, v6
    v_cmp_gt_u32 vcc, 16, v0
    s_and_saveexec_b64 s[36:37], vcc
    s_cbranch_execz rp_exit
    buffer_store_dword v4, v20, s[32:35], 0 offen
    """)
    if cfg.get("mult"):
        a(f"""
        v_readlane_b32 s40, v4, 1
        s_memrealtime s[42:43]
        s_waitcnt lgkmcnt(0)
        s_min_u32 s40, s40, 10000
        s_mul_i32 s40, s40, {cfg["mult"]}
        """)
        a.label("rp_spin")
        a("""
        s_memrealtime s[44:45]
        s_waitcnt lgkmcnt(0)
        s_sub_u32 s44, s44, s42
        s_cmp_lt_u32 s44, s40
        s_cbranch_scc1 rp_spin
        """)
    a.label("rp_exit")
    a("s_endpgm")
    return a, 32
```

```python
import sys, os, re
sys.path.insert(0, os.path.dirname(os.path.abspath(__file__)))
from asmlib import verify
from k1 import k1

HEADER = open(os.path.join(os.path.dirname(os.path.abspath(__file__)), "header.txt")).read()

def descriptor(name, nv, ns=102):
    nv8 = (nv + 7) // 8 * 8
    return f""".amdhsa_kernel {name}
  .amdhsa_next_free_vgpr {nv8}
  .amdhsa_next_free_sgpr {ns}
  .amdhsa_accum_offset {nv8}
  .amdhsa_group_segment_fixed_size 0
  .amdhsa_kernarg_size 88
  .amdhsa_user_sgpr_count 2
  .amdhsa_user_sgpr_kernarg_segment_ptr 1
  .amdhsa_system_sgpr_workgroup_id_x 1
  .amdhsa_float_denorm_mode_32 3
.end_amdhsa_kernel
"""

def build_fused(cfg):
    from k2 import k2
    from asmlib import Asm
    from layout import WS_USED
    a1, nv1 = k1(cfg)
    a2, nv2 = k2(cfg)
    t1 = a1.text()
    head, tail = t1.rsplit("k1_exit:\n  s_endpgm\n", 1)
    first = head.index("s_cbranch_scc1 k1_exit")
    head = head[:first] + "s_cbranch_scc1 k2_exit" + head[first + len("s_cbranch_scc1 k1_exit"):]
    head = head.replace("s_endpgm", "s_branch k1_exit")
    g = Asm()
    g.label("k1_exit")
    g(f"""
    s_mov_b64 exec, -1
    s_waitcnt vmcnt(0) lgkmcnt(0)
    s_barrier
    s_cmp_lg_u32 s26, 0
    s_cbranch_scc1 kf_go
    s_mov_b32 s28, s22
    s_mov_b32 s29, s23
    s_mov_b32 s30, 256
    s_mov_b32 s31, 0x00020000
    v_mov_b32 v2, 1
    v_and_b32 v4, 3, v0
    v_lshlrev_b32 v4, 6, v4
    s_and_b32 s32, s2, 3
    s_lshl_b32 s32, s32, 6
    s_mov_b64 exec, 1
    buffer_atomic_add v2, off, s[28:31], s32 offset:16 sc1
    s_mov_b64 exec, 15
    s_mov_b32 s33, 0
    """)
    g.label("kf_poll")
    g(f"""
    buffer_load_dword v3, v4, s[28:31], 0 offen offset:16 sc1
    s_add_u32 s33, s33, 1
    s_waitcnt vmcnt(0)
    v_cmp_gt_u32 vcc, 64, v3
    s_cbranch_vccz kf_seen
    s_cmp_lt_u32 s33, 200000
    s_cbranch_scc1 kf_poll
    """)
    g.label("kf_seen")
    g("s_mov_b64 exec, -1\nbuffer_inv sc1\ns_waitcnt vmcnt(0)")
    g.label("kf_go")
    g("s_barrier")
    body = head + g.text() + a2.text()
    bad = verify(body)
    for b in bad:
        print("HAZARD", b, file=sys.stderr)
    assert not bad
    name = "standalone__edge_featured_mpnn_mpnn__graph_kernel"
    s = HEADER
    if cfg.get("fused") == 2:
        s += f"; @launch kernel={name} grid=(256,1,1) block=(512,1,1) lds=163840\n"
    else:
        s += "; @launch grid=(256,1,1) block=(512,1,1) lds=163840\n"
    s += '.amdgcn_target "amdgcn-amd-amdhsa--gfx950"\n.text\n'
    s += f".globl {name}\n.p2align 8\n.type {name},@function\n{name}:\n" + body
    s += '.section .rodata,"a"\n.p2align 6\n' + descriptor(name, max(nv1, nv2))
    return s


def build(cfg):
    if cfg.get("fused"):
        return build_fused(cfg)
    parts = [("mpnn_prep_kernel", *k1(cfg), 163840)]
    if cfg.get("k2", True):
        from k2 import k2, K2_LDS
        parts.append(("mpnn_edge_kernel", *k2(cfg), K2_LDS))
    order = cfg.get("order", "".join(str(i) for i in range(len(parts))))
    if "e" in str(order):
        from asmlib import Asm
        e = Asm(); e("s_endpgm")
        parts.append(("mpnn_empty_kernel", e, 8, 0))
    s = HEADER
    for ch in str(order):
        name, a, nv, lds = parts[-1] if ch == "e" else parts[int(ch)]
        s += f"; @launch kernel={name} grid=(256,1,1) block=(512,1,1) lds={lds}\n"
    if cfg.get("report"):
        from report import report
        items = [(0, "g", 0, "min"), (0, "g", 3, "max"), (0, "g", 5, "max"), (0, "g", 8, "max"), (0, "g", 9, "max"),
                 (0, "s", 2, "max"), (0, "s", 4, "max"), (0, "s", 9, "max"),
                 (1, "a", 0, "min"), (1, "a", 3, "max"), (1, "a", 4, "max"), (1, "a", 5, "max"), (1, "a", 7, "max")]
        if cfg.get("ritem") == 99:
            items = [(0, "g", 58, "min"), (0, "g", 58, "max")]
        elif cfg.get("ritem") == 98:
            items = [(0, "g", 0, "min"), (0, "g", 0, "max")]
        elif "ritem" in cfg:
            items = [items[0], items[cfg["ritem"]]]
        parts.append(("mpnn_report_kernel", *report({"items": items, "mult": cfg.get("mult", 0)}), 1024))
        s += "; @launch kernel=mpnn_report_kernel grid=(1,1,1) block=(256,1,1) lds=1024\n"
    s += '.amdgcn_target "amdgcn-amd-amdhsa--gfx950"\n.text\n'
    for name, a, nv, lds in parts:
        body = a.text()
        bad = verify(body)
        for b in bad:
            print("HAZARD", name, b, file=sys.stderr)
        assert not bad
        s += f".globl {name}\n.p2align 8\n.type {name},@function\n{name}:\n"
        if name == parts[0][0]:
            s += "mpnn_code_begin:\n"
        s += re.sub(r" ;->.*", "", body)
    s += "mpnn_code_end:\n"
    s += '.section .rodata,"a"\n'
    for name, a, nv, lds in parts:
        s += ".p2align 6\n" + descriptor(name, nv)
    return s

if __name__ == "__main__":
    cfg = {}
    out = "standalone__edge_featured_mpnn_mpnn__graph.s"
    for arg in sys.argv[1:]:
        k, val = arg.split("=", 1)
        if k == "out":
            out = val
        else:
            try: val = val if k in ("order", "prio_old", "prio_new") else int(val)
            except ValueError: pass
            cfg[k] = val
    open(out, "w").write(build(cfg))
    print("wrote", out)
```

```python
from asmlib import Asm, Alloc, vr, sr
from layout import *
from k1 import entry, srd, Prof, S_X, S_E, S_SRC, S_DST, S_W1, S_B1, S_W2, S_B2, S_OUT, S_DBG, S_WS, S_WAVE

OUTOFF, DEGF, MAP, DEGC, FLAG, DONE = 0, 256, 1024, 2304, 2560, 2816
EXP = 4096
A3L = EXP + MAXT * 1024
HB = A3L + 4096
HS = 1040
K2_LDS = HB + 48 * HS
R = 4
G2 = [[], [0], [1, 2], [3], [4, 5], [6, 7]]


def k2(cfg):
    a = Asm()
    PS, QS, WSR, OS, X0, X1, X2 = 28, 32, 36, 40, 44, 48, 52
    HD = 56
    s = Alloc(64, 100)
    NT1, POF, SLO, FL = s(6), s(6), s(6), s(5)
    t1 = s(4, 2)
    t2, t3, t4 = t1 + 1, t1 + 2, t1 + 3
    W2O, GS, MB, S128 = s(), s(), s(), s()
    SX = s(2, 2)
    lo = Alloc(4, 24)
    SB, SE, SBASE = lo(2, 2), lo(2, 2), lo(2, 2)
    EV, RP, RC, STEP, ODD, PIDX, PSL, QSO = (lo() for _ in range(8))
    HWO = lo(5)
    L = 1
    v = Alloc(2, 256)
    vC16, vEXR, vL16, vHW, vA3B, vA3A, vDEG, vCHK, vCOL, vB2, vONE, vQA, vTMP, vDONE, vPOLL = (v() for _ in range(15))
    INFO = v(5)
    A3 = v(2)
    Y = [v(16, 4), v(16, 4)]
    T = v(24, 4)
    RCP = T + 16
    C = v(16, 4)
    NR = v(8); DR = v(8)
    DATA = [v(8, 4) for _ in range(R)]
    EX = [v(4, 4) for _ in range(R)]
    QD = v(8, 4)
    AS = v(4, 4)
    ZP = v(2)
    vIDX = v()
    ACC = v(24, 4)
    W2B = v(32, 4)
    FR = [T, T + 4, T + 8, T + 12, v(4, 4)]
    vFRA, vFRB, vIDX2 = v(), v(), v()
    out_flags = cfg.get("k2_store", "sc1").replace("plain", "")
    prio_old = [int(c) for c in str(cfg.get("prio_old", "22110"))]
    prio_new = [int(c) for c in str(cfg.get("prio_new", "32211"))]
    later = []
    ENTRIES = ",".join(f"k2_first{p},k2_j1_{p},k2_j2_{p},k2_j3_{p}" for p in range(R))
    BOUNDS = ",".join(f"k2_bound{t}" for t in range(5))

    def E_(q, i):
        a(f"v_exp_f32 v{T+i}, v{Y[q]+i}")

    def mK(q, pn):
        a(f"v_mfma_f32_32x32x8bf16_1k {vr(Y[q],16)}, {vr(A3,2)}, {vr(EX[pn]+2,2)}, {vr(C,16)}")

    def mZ(q, pn):
        a(f"v_smfmac_f32_32x32x32_bf16 {vr(Y[q],16)}, {vr(AS,4)}, {vr(DATA[pn],8)}, v{vIDX}")

    def mQ(n):
        if n == 0:
            a(f"v_mfma_f32_32x32x8bf16_1k {vr(C,16)}, {vr(ZP,2)}, {vr(ZP,2)}, 0")
        else:
            a(f"v_smfmac_f32_32x32x32_bf16 {vr(C,16)}, {vr(AS,4)}, {vr(QD,8)}, v{vIDX}")

    def pk(d, x, y, z):
        return f"v_pk_fma_f32 {vr(d,2)}, {vr(x,2)}, {vr(y,2)}, {vr(z,2)}"

    def chain(q, h):
        return ([pk(NR+2*j, NR+2*j, T+8*h+2*j, NR+2*j) for j in range(4)]
                + [pk(NR+2*j, Y[q]+8*h+2*j, DR+2*j, NR+2*j) for j in range(4)]
                + [pk(DR+2*j, DR+2*j, T+8*h+2*j, DR+2*j) for j in range(4)])

    def chain_first(q):
        return ([f"v_pk_add_f32 {vr(DR+2*j,2)}, {vr(T+2*j,2)}, 1.0 op_sel_hi:[1,0]" for j in range(4)]
                + [pk(NR+2*j, Y[q]+2*j, T+8+2*j, Y[q]+2*j) for j in range(4)]
                + [pk(NR+2*j, Y[q]+8+2*j, DR+2*j, NR+2*j) for j in range(4)]
                + [pk(DR+2*j, DR+2*j, T+8+2*j, DR+2*j) for j in range(4)])

    def exread(p, pn):
        a(f"ds_read_b128 {vr(EX[pn],4)}, v{vEXR} offset:{p*1024}")

    def gathers(pn, so=None):
        so = PSL if so is None else so
        for n in range(2):
            a(f"buffer_load_dwordx4 {vr(DATA[pn]+4*n,4)}, v{EX[pn]}, s[{PS}:{PS+3}], s{so} offen offset:{64*n} {cfg.get('gflag', '').replace('_', ' ')}")

    def qload():
        for n in range(2):
            a(f"buffer_load_dwordx4 {vr(QD+4*n,4)}, v{vQA}, s[{QS}:{QS+3}], s{QSO} offen offset:{64*n} {cfg.get('qflag', '').replace('_', ' ')}")

    def wrap(p):
        if p == R - 1:
            a(f"v_add_u32 v{vEXR}, {R*1024}, v{vEXR}")

    def pf_switch(pnext, ahead=1):
        a(f"""
        s_mov_b32 m0, s{PIDX}
        s_add_u32 s{PIDX}, s{PIDX}, 1
        s_movrels_b32 s{t1}, s{POF}
        s_movrels_b32 s{RP}, s{NT1}
        s_movrels_b32 s{PSL}, s{SLO}
        s_add_u32 s{t1}, s{t1}, {(1024*(ahead - pnext)) & 0xffffffff}
        s_add_u32 s{RP}, s{RP}, 1
        v_add_u32 v{vEXR}, s{t1}, v{vL16}
        """)
        if cfg.get("x_nogather"):
            a(f"s_mov_b32 s{PSL}, 0x7f000000")
        if cfg.get("x_oneslice"):
            a(f"s_and_b32 s{PSL}, s2, 7\ns_mul_i32 s{PSL}, s{PSL}, {SL}")

    def schedule():
        a(f"""
        s_min_u32 s{EV}, s{RP}, s{RC}
        s_sub_u32 s{RP}, s{RP}, s{EV}
        s_sub_u32 s{RC}, s{RC}, s{EV}
        s_cmp_eq_u32 s{RP}, 0
        s_cselect_b64 vcc, -1, 0
        s_sub_u32 s{EV}, s{EV}, 1
        """)

    def setaddr(reg, label):
        a(f"s_add_u32 s{reg}, s{SBASE}, {label}-k2_pcbase\ns_addc_u32 s{reg+1}, s{SBASE+1}, 0")

    def w2load(slices):
        for j, sl in enumerate(slices):
            a(f"s_add_u32 s{t1}, s{W2O}, {0x70000000 if cfg.get('x_now2') else 4096*sl}")
            for k in range(4):
                a(f"buffer_load_dwordx4 {vr(W2B+16*j+8*(k&1)+4*(k>>1),4)}, v{vL16}, s[{WSR}:{WSR+3}], s{t1} offen offset:{1024*k}")

    def step_read(st, buf):
        j, tt, ks = st
        if tt < 2:
            a(f"ds_read_b128 {vr(FR[buf],4)}, v{vFRA} offset:{tt*16*HS + ks*64 + j*128}")
            return 1
        for h in range(2):
            a(f"ds_read2_b32 {vr(FR[buf]+2*h,2)}, v{vFRB} offset0:{32*j + 4*h} offset1:{32*j + 4*h + 2}")
        return 2

    def step_mfma(st, buf, U):
        j, tt, ks = st
        r = ACC + 8 * tt + 4 * U
        if tt < 2:
            a(f"v_mfma_f32_16x16x32_bf16 {vr(r,4)}, {vr(FR[buf],4)}, {vr(W2B+16*j+8*U+4*ks,4)}, {vr(r,4)}")
        else:
            a(f"v_smfmac_f32_16x16x64_bf16 {vr(r,4)}, {vr(FR[buf],4)}, {vr(W2B+16*j+8*U,8)}, v{vIDX2}")

    def steps_by_slice(n):
        return [(j, tt, ks) for j in range(n) for tt, ks in ((0, 0), (1, 0), (0, 1), (1, 1), (2, 0))]

    NB = 5

    def first_reads(steps):
        for i in range(NB):
            step_read(steps[i], i)

    def gemm2_run(steps, fill=(), per=2, hook=None):
        fill = list(fill)
        order = []
        for i in range(NB):
            order += [i] * (1 if steps[i][1] < 2 else 2)
        waited = -1
        for i, st in enumerate(steps):
            pos = len(order) - 1 - order[::-1].index(i)
            if pos > waited:
                a(f"s_waitcnt lgkmcnt({len(order) - 1 - pos})")
                waited = pos
            for U in range(2):
                step_mfma(st, i % NB, U)
                if U == 1 and i + NB < len(steps):
                    order += [i + NB] * step_read(steps[i + NB], i % NB)
                for _ in range(per):
                    if fill:
                        x = fill.pop(0)
                        a(x)
                        if x.startswith("ds_"):
                            order.append(None)
            if hook:
                fill += hook(i)
        return fill

    def acc_init(DG=None):
        DG = Y[1] if DG is None else DG
        a(f"v_and_b32 v{vTMP}, 48, v{L}")
        for tt in range(3):
            a(f"ds_read_b128 {vr(DG+4*tt,4)}, v{vTMP} offset:{DEGF + 64*tt}")
        a(f"""
        s_mov_b32 s{t1}, {C_NLOG2E}
        v_lshlrev_b32 v{DG+12}, 16, v{vB2}
        v_and_b32 v{DG+13}, 0xffff0000, v{vB2}
        v_mul_f32 v{DG+12}, s{t1}, v{DG+12}
        v_mul_f32 v{DG+13}, s{t1}, v{DG+13}
        s_waitcnt lgkmcnt(0)
        """)
        for tt in range(3):
            for U in range(2):
                for r in range(4):
                    a(f"v_mul_f32 v{ACC+8*tt+4*U+r}, v{DG+4*tt+r}, v{DG+12+U}")

    def start_ops(t):
        o = []
        if t + 1 < 5:
            o += [f"s_lshr_b32 s{t3}, s{FL+t+1}, 16", f"v_add_u32 v{vA3A}, s{t3}, v{vA3B}"]
        o.append(f"v_lshrrev_b32 v{vDEG}, 16, v{INFO+t}")
        if t + 2 < 5:
            o.append(f"v_mad_u32_u16 v{vQA}, v{INFO+t+2}, s{S128}, v{vC16}")
        if G2[t]:
            d = (G2[t][0] - (G2[t-1][0] if G2[t-1] else 0)) * 128
            if d:
                o += [f"v_add_u32 v{vFRA}, {d}, v{vFRA}", f"v_add_u32 v{vFRB}, {d}, v{vFRB}"]
        o += [f"s_mov_b32 s{QSO}, s{SLO + min(t+2, 5)}",
              f"s_add_u32 s{SB}, s{SBASE}, k2_bound{t}-k2_pcbase",
              f"s_addc_u32 s{SB+1}, s{SBASE+1}, 0",
              f"s_lshl_b32 s{STEP}, s{NT1+t}, 1",
              f"s_and_b32 s{ODD}, s{FL+t}, 1",
              f"s_min_u32 s{EV}, s{RP}, s{NT1+t}",
              f"s_sub_u32 s{RP}, s{RP}, s{EV}",
              f"s_sub_u32 s{RC}, s{NT1+t}, s{EV}",
              f"s_cmp_eq_u32 s{RP}, 0",
              f"s_cselect_b64 vcc, -1, 0",
              f"s_sub_u32 s{EV}, s{EV}, 1"]
        return o

    def start_jump(t, loads):
        po, pn_ = prio_old[t], prio_new[t]
        change = t == 0 or (po, pn_) != (prio_old[t-1], prio_new[t-1])
        for j, sl in enumerate(loads):
            a(f"s_add_u32 s{t1+j}, s{W2O}, {0x70000000 if cfg.get('x_now2') else 4096*sl}")
        split = change and po != pn_
        a(f"s_cmp_lt_u32 s{S_WAVE}, 4" if split else f"s_bitcmp1_b32 s{FL+t}, 1")
        for j, sl in enumerate(loads):
            for k in range(4):
                a(f"buffer_load_dwordx4 {vr(W2B+16*j+8*(k&1)+4*(k>>1),4)}, v{vL16}, s[{WSR}:{WSR+3}], s{t1+j} offen offset:{1024*k} {cfg.get('wflag', '').replace('_', ' ')}")
        if change:
            a(f"s_setprio {po}")
        if split:
            a(f"s_cbranch_scc1 k2_prio{t}\ns_setprio {pn_}")
            a.label(f"k2_prio{t}")
            a(f"s_bitcmp1_b32 s{FL+t}, 1\ns_nop 1")
        a(f"s_cbranch_scc1 k2_rare\ns_setpc_b64 s[{SE}:{SE+1}] ;-> {ENTRIES}")

    pr = Prof(a, cfg, 1, 250)
    entry(a, "k2", pr)
    RAW = Y[0]
    HDR, A3G = RAW + 12, RAW + 14
    vRI, vL4, FST = C, C + 1, C + 4
    XT = [C + 8, C + 12]
    SEL0, SEL1, K0, K1_ = T, T + 1, T + 2, T + 3
    a(f"""
    s_mul_i32 s{MB}, s2, {MEMB}
    s_add_u32 s{MB}, s{MB}, {OFF_LIST}
    v_and_b32 v{vQA}, 60, v{L}
    v_lshlrev_b32 v{vQA}, 2, v{vQA}
    v_and_b32 v{vRI}, 28, v{L}
    v_lshlrev_b32 v{vA3B}, 3, v{L}
    v_lshlrev_b32 v{vL4}, 2, v{L}
    s_lshl_b32 s{t1}, s{S_WAVE}, 8
    s_add_u32 s{t3}, s{MB}, s{t1}
    s_add_u32 s{t4}, s{t3}, 4096
    """)
    def item_ids(t):
        a(f"""
        s_add_u32 s{t1}, s{S_WAVE}, {8*t}
        s_mul_i32 s{t2}, s{t1}, 13
        s_lshr_b32 s{t2}, s{t2}, 6
        s_mul_i32 s{SLO+t}, s{t2}, {SL}
        s_lshl_b32 s{FL+t}, s{t2}, 25
        s_mul_i32 s{t2}, s{t2}, 5
        s_sub_u32 s{POF+t}, s{t1}, s{t2}
        """)
    item_ids(0)
    a(f"""
    s_mul_i32 s{t1}, s2, 1280
    s_lshl_b32 s{t2}, s{POF}, 8
    s_add_u32 s{GS}, s{t1}, s{t2}
    s_add_u32 s{GS}, s{GS}, {OFF_FIRST}
    s_waitcnt lgkmcnt(0)
    """)
    if cfg.get("prof") == 7: pr.stamp(42)
    srd(a, WSR, S_WS, WS_USED)
    a(f"""
    buffer_load_dwordx4 {vr(FST,4)}, v{vQA}, s[{WSR}:{WSR+3}], s{GS} offen
    buffer_load_dword v{HDR}, v{vL4}, s[{WSR}:{WSR+3}], s{MB} offen
    buffer_load_dwordx4 {vr(RAW,4)}, v{vQA}, s[{WSR}:{WSR+3}], s{t3} offen offset:256
    buffer_load_dwordx4 {vr(RAW+4,4)}, v{vQA}, s[{WSR}:{WSR+3}], s{t3} offen offset:2304
    buffer_load_dwordx4 {vr(RAW+8,4)}, v{vQA}, s[{WSR}:{WSR+3}], s{t4} offen offset:256
    s_lshl_b32 s{t3}, s{S_WAVE}, 9
    s_add_u32 s{t2}, s{t3}, {OFF_A3T}
    buffer_load_dwordx2 {vr(A3G,2)}, v{vA3B}, s[{WSR}:{WSR+3}], s{t2} offen
    """)
    srd(a, X0, S_B2, 512)
    a(f"""
    s_lshl_b32 s{t2}, s{S_WAVE}, 6
    v_and_b32 v{vCOL}, 15, v{L}
    v_lshlrev_b32 v{vCOL}, 2, v{vCOL}
    v_add_u32 v{vCOL}, s{t2}, v{vCOL}
    buffer_load_dword v{vB2}, v{vCOL}, s[{X0}:{X0+3}], 0 offen
    """)
    if cfg.get("prof") == 7: pr.stamp(43)
    for t in range(1, 5):
        item_ids(t)
    srd(a, PS, S_WS, 8 * SL)
    srd(a, QS, S_WS, 8 * SL, off=OFF_Q)
    srd(a, OS, S_OUT, N * 512)
    a(f"""
    s_movk_i32 s{S128}, 128
    v_and_b32 v{K0}, 3, v{L}
    v_lshlrev_b32 v{vC16}, 4, v{K0}
    v_and_b32 v{SEL0}, 1, v{L}
    v_cmp_eq_u32 vcc, 0, v{SEL0}
    v_mov_b32 v{T+4}, 0x03020c0c
    v_mov_b32 v{T+5}, 0x0c0c0302
    v_mov_b32 v{T+6}, 0x0c0c0c0c
    v_cndmask_b32 v{T+4}, v{T+4}, v{T+5}, vcc
    v_cmp_gt_u32 vcc, 2, v{K0}
    s_mov_b32 s{QSO}, s{SLO}
    s_mov_b32 s{PSL}, {"0x7f000000" if cfg.get("x_nogather") else "s%d" % SLO}
    v_cndmask_b32 v{SEL0}, v{T+6}, v{T+4}, vcc
    v_cndmask_b32 v{SEL1}, v{T+4}, v{T+6}, vcc
    """)
    def consts():
        a(f"""
        s_lshl_b32 s{W2O}, s{S_WAVE}, 15
        s_add_u32 s{W2O}, s{W2O}, {OFF_W2F}
        v_lshlrev_b32 v{vL16}, 4, v{L}
        v_mov_b32 v{vONE}, 1
        v_add_u32 v{vA3B}, {A3L}, v{vA3B}
        v_add_u32 v{vA3A}, s{t3}, v{vA3B}
        v_lshlrev_b32 v{vDONE}, 2, v0
        v_mov_b32 v{vCHK}, 0
        ds_write_b32 v{vDONE}, v{vCHK} offset:2048
        v_add_u32 v{vDONE}, {DONE-256}, v{vL4}
        v_mul_u32_u24 v{vHW}, {HS//4}, v{vRI}
        v_add_u32 v{vHW}, v{vHW}, v{vC16}
        v_lshrrev_b32 v{K1_}, 5, v{L}
        v_lshl_add_u32 v{vHW}, v{K1_}, 3, v{vHW}
        v_add_u32 v{vHW}, {HB}, v{vHW}
        v_and_b32 v{vFRA}, 15, v{L}
        v_mul_u32_u24 v{vFRA}, {HS}, v{vFRA}
        v_and_b32 v{T+4}, 48, v{L}
        v_add_u32 v{vFRA}, v{vFRA}, v{T+4}
        v_add_u32 v{vFRA}, {HB}, v{vFRA}
        v_and_b32 v{vFRB}, 7, v{L}
        v_mul_u32_u24 v{vFRB}, {HS}, v{vFRB}
        v_lshl_add_u32 v{vFRB}, v{T+4}, 1, v{vFRB}
        v_bfe_u32 v{T+5}, v{L}, 3, 1
        v_lshl_add_u32 v{vFRB}, v{T+5}, 2, v{vFRB}
        v_add_u32 v{vFRB}, {HB + 32*HS}, v{vFRB}
        v_mul_u32_u24 v{vIDX2}, 0xaaaa, v{T+5}
        v_add_u32 v{vIDX2}, 0x4444, v{vIDX2}
        s_lshl_b32 s{t1}, s{S_WAVE}, 12
        s_add_u32 s{t1}, s{t1}, {EXP}
        v_add_u32 v{vTMP}, s{t1}, v{vL16}
        """)
        a(f"""
        v_bfe_u32 v{T+4}, v{L}, 3, 1
        v_cmp_eq_u32 vcc, v{T+4}, v{K1_}
        v_bfe_u32 v{T+5}, v{L}, 4, 1
        v_bfe_u32 v{T+6}, v{L}, 2, 1
        v_lshl_add_u32 v{T+5}, v{T+5}, 1, v{T+6}
        v_cndmask_b32 v{T+4}, 7, v{T+5}, vcc
        v_mov_b32 v{T+8}, 0x3f80
        v_mul_u32_u24 v{vIDX}, 0x5555, v{K0}
        v_mov_b32 v{ZP}, 0
        v_mov_b32 v{ZP+1}, 0
        """)
        for j in range(4):
            a(f"v_cmp_eq_u32 vcc, {j}, v{T+4}\ns_nop 1\nv_cndmask_b32 v{AS+j}, 0, v{T+8}, vcc")
        for t in range(5):
            a(f"""
            s_mul_i32 s{HWO+t}, s{POF+t}, {8*HS}
            s_lshr_b32 s{t2}, s{FL+t}, 18
            s_add_u32 s{HWO+t}, s{HWO+t}, s{t2}
            """)
        a(f"""
        s_mov_b32 s{NT1+5}, 1000
        s_mov_b32 s{POF+5}, {EXP}
        s_mov_b32 s{SLO+5}, 0x7f000000
        s_mov_b32 s{PIDX}, 0
        """)

    cpos = cfg.get("cpos", 1)
    if cpos == 0:
        consts()
    for t in range(5):
        a(f"s_lshl_b32 s{t1}, s{POF+t}, 5\nv_add_u32 v{INFO+t}, s{t1}, v{vRI}")
    a(f"s_getpc_b64 s[{SBASE}:{SBASE+1}]")
    a.label("k2_pcbase")
    a("s_waitcnt vmcnt(6)")
    for j in range(R):
        a(f"v_mad_u32_u16 v{EX[j]}, v{FST+j}, s{S128}, v{vC16}")
    gathers(0)
    nearly = 1
    a("s_waitcnt vmcnt(7)")
    for t in range(5):
        a(f"ds_bpermute_b32 v{INFO+t}, v{INFO+t}, v{HDR}")
    for g in range(6):
        a(f"v_readlane_b32 s{HD+g}, v{HDR}, {48+g}")
    a(f"""
    s_waitcnt lgkmcnt(4)
    v_mad_u32_u16 v{vQA}, v{INFO}, s{S128}, v{vC16}
    """)
    qload()
    if cpos == 1:
        consts()
    a(f"s_cmp_lg_u32 s{HD+5}, 0")
    pr.stamp(1)
    a(f"""
    s_cbranch_scc1 k2_slow_static
    s_and_b32 s{t1}, s{HD+2}, 0xff
    s_lshr_b32 s{t2}, s{HD+2}, 10
    s_add_u32 s{t4}, s{t1}, s{t2}
    s_add_u32 s{t4}, s{t4}, 1
    s_lshl_b32 s{GS}, s{t4}, 10
    s_lshl_b32 s{t1}, s{S_WAVE}, 2
    s_sub_u32 s{t4}, s{t4}, s{t1}
    """)
    for j in range(R):
        a(f"v_perm_b32 v{EX[j]+2}, v{FST+j}, v{FST+j}, v{SEL0}\nv_perm_b32 v{EX[j]+3}, v{FST+j}, v{FST+j}, v{SEL1}")
    a("s_waitcnt vmcnt(6)")
    pr.stamp(2)
    for i in range(12):
        e = XT[i % 2]
        tile = 32 * (i // 4) + i % 4
        if i == 8:
            a(f"v_add_u32 v{vTMP}, 65536, v{vTMP}")
        a(f"""
        s_cmp_le_i32 s{t4}, {tile}
        v_mad_u32_u16 v{e}, v{RAW+i}, s{S128}, v{vC16}
        v_perm_b32 v{e+2}, v{RAW+i}, v{RAW+i}, v{SEL0}
        v_perm_b32 v{e+3}, v{RAW+i}, v{RAW+i}, v{SEL1}
        s_cbranch_scc1 k2_expanded
        ds_write_b128 v{vTMP}, {vr(e,4)} offset:{(tile % 64)*1024}
        """)
    a.label("k2_expanded")
    a(f"""
    s_cmp_lg_u32 s{S_WAVE}, 0
    s_cbranch_scc1 k2_nodup
    v_add_u32 v{vTMP}, s{GS}, v{vL16}
    ds_write_b128 v{vTMP}, {vr(EX[0],4)} offset:{EXP}
    """)
    a.label("k2_nodup")
    if cfg.get("prof") == 7: pr.stamp(44)
    a(f"""
    s_waitcnt vmcnt(5)
    v_and_b32 v{T+4}, 0xffff, v{HDR}
    v_lshlrev_b32 v{T+4}, 9, v{T+4}
    ds_write_b32 v{vL4}, v{T+4} offset:{OUTOFF}
    v_lshrrev_b32 v{T+5}, 16, v{HDR}
    v_cvt_f32_u32 v{T+5}, v{T+5}
    ds_write_b32 v{vL4}, v{T+5} offset:{DEGF}
    ds_write_b64 v{vA3A}, {vr(A3G,2)}
    """)
    for t in range(5):
        a(f"""
        s_mov_b32 m0, s{POF+t}
        s_nop 0
        s_movrels_b32 s{t1}, s{HD}
        s_and_b32 s{NT1+t}, s{t1}, 0xff
        s_bfe_u32 s{t2}, s{t1}, 0x20008
        s_or_b32 s{FL+t}, s{FL+t}, s{t2}
        s_andn2_b32 s{t1}, s{t1}, 0x3ff
        s_add_u32 s{POF+t}, s{t1}, {EXP}
        """)
    pf_switch(0, 0)
    late_before = cfg.get("latepre", R)
    lag = cfg.get("lag", 0)
    lagcmp = f"s_cmp_{'lt' if cfg.get('lagold', 1) else 'ge'}_u32 s{S_WAVE}, 4"
    for j in range(nearly, late_before):
        if lag and j == R - lag:
            a(f"{lagcmp}\ns_cbranch_scc1 k2_lag_a")
        gathers(j)
    if lag:
        a.label("k2_lag_a")
    if cfg.get("prof") == 7: pr.stamp(45)
    a(f"s_cmp_lt_u32 s{RP}, {R+1}\ns_waitcnt lgkmcnt(0)\ns_barrier")
    pr.stamp(3)
    if cfg.get("x_half"):
        a(f"s_cmp_ge_u32 s{S_WAVE}, 4\ns_cbranch_scc1 k2_exit\ns_cmp_lt_u32 s{RP}, {R+1}")
    a("s_cbranch_scc1 k2_short_first")
    for j in range(max(nearly, late_before), R):
        gathers(j)
    if lag:
        a(f"{lagcmp}\ns_cbranch_scc0 k2_lag_b\ns_waitcnt vmcnt({2*(R - lag - 1)})")
        for j in range(R - lag, R):
            gathers(j)
        a.label("k2_lag_b")
    wrap(R - 1)
    a(f"s_sub_u32 s{RP}, s{RP}, {R}")
    a.label("k2_primed")
    a(f"s_lshr_b32 s{t1}, s{FL}, 16\nv_add_u32 v{vA3A}, s{t1}, v{vA3B}\nds_read_b64 {vr(A3,2)}, v{vA3A}")

    def short_first():
        a.label("k2_short_first")
        for p in range(R):
            exread(p, p)
            a("s_waitcnt lgkmcnt(0)")
            gathers(p)
            wrap(p)
            a(f"s_sub_u32 s{RP}, s{RP}, 1\ns_cmp_lg_u32 s{RP}, 0\ns_cbranch_scc1 k2_pro_{p}")
            pf_switch((p + 1) % R, 0)
            a.label(f"k2_pro_{p}")
        a("s_branch k2_primed")
    later.append(short_first)
    mQ(0)
    a(f"s_waitcnt vmcnt({2*R-2})")
    mQ(1)
    if cfg.get("acc_mode", 0) == 0:
        acc_init()
    if cfg.get("prof") == 7: pr.stamp(46)
    a(f"""
    v_mad_u32_u16 v{vQA}, v{INFO+1}, s{S128}, v{vC16}
    s_mov_b32 s{QSO}, s{SLO+1}
    s_waitcnt lgkmcnt(0)
    """)
    mK(0, 0)
    qload()
    exread(0, 0)
    a(f"v_add_u32 v{vEXR}, 1024, v{vEXR}")
    for k in range(4):
        a(f"buffer_load_dword v{W2B+k}, v{vL16}, s[{PS}:{PS+3}], s{SLO+5} offen")
    setaddr(SE, "k2_first0")
    a(f"s_waitcnt vmcnt({2*R+4})")
    mZ(0, 0)
    pr.stamp(4)
    if cfg.get("prof", 0) == 3:
        pr.cyc(40)
    a("\n".join(start_ops(0)))
    start_jump(0, [])

    ne1 = cfg.get("ne1", 5)
    ne2 = cfg.get("ne2", 3)

    def block(p, wait, ops, split, check=True):
        q, pn = p % 2, (p + 1) % R
        mK(q ^ 1, pn)
        for i in range(ne1):
            E_(q, i)
        a(f"s_waitcnt vmcnt({wait}) lgkmcnt(0)")
        mZ(q ^ 1, pn)
        gathers(p)
        exread(p, pn)
        for i in range(ne1, ne1 + ne2):
            E_(q, i)
        fine = cfg.get("fine", 0) if len(ops) == 24 else 0
        if fine:
            rest = list(range(ne1 + ne2, 16))
            for k in range(12):
                a(ops[k])
                if k >= fine - 1 and rest and (fine != 3 or k % 3 != 2):
                    E_(q, rest.pop(0))
            wrap(p)
            for i in rest:
                E_(q, i)
            split = 12
        else:
            a("\n".join(ops[:split]))
            wrap(p)
            for i in range(ne1 + ne2, 16):
                E_(q, i)
        a("\n".join(ops[split:-3]))
        if check:
            a(f"s_sub_u32 s{EV}, s{EV}, 1")
        a("\n".join(ops[-3:]))

    a(".p2align 6")
    for p in range(R):
        q, pn = p % 2, (p + 1) % R
        a.label(f"k2_normal{p}")
        block(p, 2 * R - 4, chain(q, 0) + chain(q, 1), cfg.get("split", 8))
        a(f"s_cbranch_scc1 k2_event{pn}" if pn else "s_cbranch_scc0 k2_normal0")

    straight = cfg.get("straight", 0)
    for p in ([R - 1] + list(range(R - 1)) if straight else range(R)):
        q, pn = p % 2, (p + 1) % R
        if straight:
            ps = (p + 1) % R
            a.label(f"k2_event{ps}")
            a(f"s_cbranch_vccz k2_last{ps}")
            a(f"s_cmp_lg_u32 s{RC}, {R-1}\ns_cselect_b64 vcc, -1, 0")
            pf_switch(ps)
            a(f"s_cmp_lt_u32 s{RP}, {R}\ns_cselect_b64 vcc, -1, vcc\ns_nop 0\ns_cbranch_vccnz k2_switch{ps}")
            a(f"s_sub_u32 s{RP}, s{RP}, {R-1}")
            for k in range(R - 1):
                pp = (ps + k) % R
                block(pp, 2 * R - 4, chain(pp % 2, 0) + chain(pp % 2, 1), cfg.get("split", 8), check=False)
        else:
            a.label(f"k2_event{p}")
            a(f"s_cbranch_vccnz k2_switch{p}")
        a.label(f"k2_last{p}")
        mQ(0)
        a(f"""
        ds_read_b64 {vr(A3,2)}, v{vA3A}
        ds_read_b32 v{vPOLL}, v{vDONE}
        """)
        for i in range(4):
            E_(q, i)
        a(f"s_waitcnt vmcnt({2*R-4}) lgkmcnt(2)")
        mQ(1)
        gathers(p)
        qload()
        a(f"s_cmp_lg_u32 s{ODD}, 0")
        for i in range(4, 8):
            E_(q, i)
        a(f"s_cbranch_scc1 k2_lastodd{p}")
        fin = f"s_cbranch_scc1 k2_lswitch{p}\ns_setpc_b64 s[{SB}:{SB+1}] ;-> {BOUNDS}"

        a("s_waitcnt lgkmcnt(0)")
        mK(q ^ 1, pn)
        exread(p, pn)
        for i in range(8, 13):
            E_(q, i)
        wrap(p)
        a(f"v_cmpx_lt_u32 vcc, s{STEP}, v{vDEG}")
        c0, c1 = chain(q, 0), chain(q, 1)
        a("\n".join(c0[:4]))
        a(f"s_add_u32 s{STEP}, s{STEP}, 1")
        a("\n".join(c0[4:]))
        for i in range(13, 16):
            E_(q, i)
        setaddr(SE, f"k2_first{pn}")
        a(f"v_cmpx_lt_u32 vcc, s{STEP}, v{vDEG}")
        a("\n".join(c1[:4]))
        a(f"s_sub_u32 s{RP}, s{RP}, 1")
        a("\n".join(c1[4:8]))
        a(f"s_cmp_eq_u32 s{RP}, 0")
        a("\n".join(c1[8:]))
        a("s_mov_b64 exec, -1")
        mZ(q ^ 1, pn)
        first_reads(steps_by_slice(1))
        for i in range(8):
            a(f"v_rcp_f32 v{RCP+i}, v{DR+i}")
        a(fin)
        a.label(f"k2_lastodd{p}")
        a(f"v_cmpx_lt_u32 vcc, s{STEP}, v{vDEG}")
        a("\n".join(c0[:4]))
        setaddr(SE, f"k2_first{pn}")
        a("\n".join(c0[4:8]))
        a(f"s_sub_u32 s{RP}, s{RP}, 1\ns_cmp_eq_u32 s{RP}, 0")
        a("\n".join(c0[8:]))
        a("s_mov_b64 exec, -1\ns_waitcnt lgkmcnt(0)")
        mK(q ^ 1, pn)
        exread(p, pn)
        for i in range(4):
            a(f"v_rcp_f32 v{RCP+i}, v{DR+i}")
        mZ(q ^ 1, pn)
        first_reads(steps_by_slice(1))
        wrap(p)
        for i in range(4, 8):
            a(f"v_rcp_f32 v{RCP+i}, v{DR+i}")
        a(fin)

    for p in range(R):
        q, pn = p % 2, (p + 1) % R
        a.label(f"k2_j3_{p}")
        a(f"s_branch k2_firstg{p}")
        a.label(f"k2_j2_{p}")
        a(f"s_branch k2_last{p}")
        a.label(f"k2_j1_{p}")
        a(f"s_branch k2_normal{p}")
        a.label(f"k2_first{p}")
        block(p, 2 * R + 2, chain_first(q), 4)
        pp = pn
        for k in range(cfg.get("nrel", 2)):
            a(f"s_cbranch_scc1 k2_event{pp}")
            a.label(f"k2_rel{k}_{pp}")
            block(pp, 2 * R + 2, chain(pp % 2, 0) + chain(pp % 2, 1), cfg.get("split", 8))
            pp = (pp + 1) % R
        a(f"s_cbranch_scc0 k2_normal{pp}\ns_branch k2_event{pp}")
        a.label(f"k2_switch{p}")
        if not straight:
            pf_switch(p)
        a(f"s_cmp_eq_u32 s{RC}, 0\ns_cbranch_scc1 k2_last{p}")
        schedule()
        a(f"s_branch k2_normal{p}")
        a.label(f"k2_lswitch{p}")
        pf_switch(pn)
        a(f"s_setpc_b64 s[{SB}:{SB+1}] ;-> {BOUNDS}")

    for t in range(5):
        sl = [] if cfg.get("x_nogemm2") else G2[t]
        n = 6 * len(sl)
        a.label(f"k2_bound{t}")
        if cfg.get("prof", 0) > 1:
            pr.cyc(8 + t)
        fill = []
        for j in range(8):
            fill.append(f"v_maximum3_f32 v{vCHK}, v{vCHK}, v{DR+j}, abs(v{NR+j})")
        if n:
            for j in range(8):
                fill.append(f"v_mul_f32 v{NR+j}, v{NR+j}, v{RCP+j}")
        else:
            for j in range(4):
                fill.append(f"v_pk_mul_f32 {vr(NR+2*j,2)}, {vr(NR+2*j,2)}, {vr(RCP+2*j,2)}")
        fill.append(f"v_add_u32 v{vTMP}, s{HWO+t}, v{vHW}")
        for j in range(4):
            fill.append(f"v_cvt_pk_bf16_f32 v{NR+j}, v{NR+2*j}, v{NR+2*j+1}")
        fill += [f"v_add_u32 v{vDONE}, 256, v{vDONE}",
                 f"ds_write_b64 v{vTMP}, {vr(NR,2)}",
                 f"ds_write_b64 v{vTMP}, {vr(NR+2,2)} offset:64",
                 f"ds_add_u32 v{vDONE}, v{vONE}"]
        if n:
            a(f"v_readfirstlane_b32 s{t1}, v{vPOLL}")
            a(fill.pop(0))
            a(f"s_cmp_lt_u32 s{t1}, 8")
            for _ in range(3):
                a(fill.pop(0))
            a(f"s_cbranch_scc1 k2_poll{t}")
            a.label(f"k2_polled{t}")

            def emit(t=t):
                a.label(f"k2_poll{t}")
                a(f"s_mov_b32 s{t2}, 0")
                a.label(f"k2_pollagain{t}")
                a(f"""
                ds_read_b32 v{vPOLL}, v{vDONE}
                s_add_u32 s{t2}, s{t2}, 1
                s_waitcnt lgkmcnt(0)
                v_readfirstlane_b32 s{t1}, v{vPOLL}
                s_cmp_ge_u32 s{t1}, 8
                s_cselect_b32 s{t2}, 0x200000, s{t2}
                s_cmp_lt_u32 s{t2}, 0x200000
                s_cbranch_scc1 k2_pollagain{t}
                """)
                first_reads(steps_by_slice(1))
                a(f"s_branch k2_polled{t}")
            later.append(emit)
        tail_ops = start_ops(t + 1) if t < 4 else []
        late = [x for x in tail_ops if f"v{vFRA}," in x or f"v{vFRB}," in x]
        fill += [x for x in tail_ops if x not in late]
        if n:
            a("\n".join(gemm2_run(steps_by_slice(len(sl)), fill, cfg.get("per", 2))))
        else:
            a("\n".join(fill))
            a("s_waitcnt lgkmcnt(3)")
            if t == 0 and cfg.get("acc_mode", 0) == 1:
                acc_init(T)
        a("\n".join(late))
        if cfg.get("prof", 0) > 1:
            pr.cyc(24 + t)
        if t < 4:
            start_jump(t + 1, G2[t + 1])
        else:
            w2load(G2[t + 1])

    OO = Y[0]

    def out_addr_reads():
        a(f"""
        v_and_b32 v{vTMP}, 48, v{L}
        ds_read_b128 {vr(OO,4)}, v{vTMP} offset:{OUTOFF}
        ds_read_b128 {vr(OO+4,4)}, v{vTMP} offset:{OUTOFF + 64}
        v_and_b32 v{vTMP}, 16, v{L}
        v_lshrrev_b32 v{OO+10}, 5, v{L}
        v_lshl_add_u32 v{vTMP}, v{OO+10}, 3, v{vTMP}
        ds_read_b64 {vr(OO+8,2)}, v{vTMP} offset:{OUTOFF + 128}
        """)

    def out_ops(tt):
        o = []
        store = lambda x, k: f"buffer_store_dword v{x}, v{OO+k}, s[{OS}:{OS+3}], 0 offen {out_flags}"
        if tt < 2:
            for r in range(4):
                x0, x1 = ACC + 8 * tt + r, ACC + 8 * tt + 4 + r
                o += [f"v_mul_f32 v{x0}, s{t2}, v{x0}", f"v_mul_f32 v{x1}, s{t2}, v{x1}", f"v_cvt_pk_bf16_f32 v{x0}, v{x0}, v{x1}"]
                if r:
                    o.append(store(x0 - 1, 4 * tt + r - 1))
            o.append(store(ACC + 8 * tt + 3, 4 * tt + 3))
            return o
        x = ACC + 16
        o += [f"v_permlane32_swap_b32 v{x+r}, v{x+4+r}" for r in range(4)]
        o += [f"v_add_f32 v{x+r}, v{x+r}, v{x+4+r}" for r in range(4)]
        o += [f"v_mul_f32 v{x+r}, s{t2}, v{x+r}" for r in range(4)]
        o += ["s_nop 0", f"v_permlane32_swap_b32 v{x}, v{x+2}", f"v_permlane32_swap_b32 v{x+1}, v{x+3}"]
        o += [f"v_cvt_pk_bf16_f32 v{x}, v{x}, v{x+2}", f"v_cvt_pk_bf16_f32 v{x+1}, v{x+1}, v{x+3}", store(x, 8), store(x + 1, 9)]
        return o

    a(f"v_cmp_ngt_f32 vcc, 0x7b800000, v{vCHK}")
    out_addr_reads()
    a(f"""
    v_add_u32 v{vFRA}, {(G2[5][0] - G2[4][0])*128}, v{vFRA}
    v_add_u32 v{vFRB}, {(G2[5][0] - G2[4][0])*128}, v{vFRB}
    v_mov_b32 v{vTMP}, {FLAG}
    s_cbranch_vccz k2_tail_ok
    ds_write_b32 v{vTMP}, v{vONE}
    """)
    a.label("k2_tail_ok")
    a("s_waitcnt lgkmcnt(0)")
    for k in range(10):
        a(f"v_add_u32 v{OO+k}, v{OO+k}, v{vCOL}")
    seq = [(j, 2, 0) for j in range(2)] + [(j, tt, ks) for tt in range(2) for j in range(2) for ks in range(2)]
    a(f"s_mov_b32 s{t2}, {C_NLN2}\ns_barrier\nds_read_b32 v{vPOLL}, v{vTMP}")
    first_reads(seq)
    pr.stamp(5)
    if cfg.get("prof", 0) == 3:
        pr.cyc(41)
    a(f"""
    s_waitcnt lgkmcnt(7)
    v_readfirstlane_b32 s{t1}, v{vPOLL}
    s_cmp_lg_u32 s{t1}, 0
    s_waitcnt vmcnt(0)
    s_cbranch_scc1 k2_slow
    """)
    rest = gemm2_run(seq, [], 4, lambda i: out_ops(2) if i == 3 else out_ops(0) if i == 7 else [])
    pr.stamp(6)
    a("\n".join(rest))
    a("s_nop 7")
    a("\n".join(out_ops(1)))
    a.label("k2_end")
    pr.finish(7)
    a("s_endpgm")

    a.label("k2_rare")
    a(f"""
    v_sub_u32 v{vTMP}, v{vDEG}, s{STEP}
    v_min_i32 v{vTMP}, 0, v{vTMP}
    v_cvt_f32_i32 v{vTMP}, v{vTMP}
    s_cmp_eq_u32 s{STEP}, 0
    s_cselect_b32 s{t1}, 8, 4
    s_cmp_ge_u32 s{STEP}, {2*(R-2)}
    s_cselect_b32 s{t1}, 12, s{t1}
    """)
    for j in range(8):
        a(f"v_exp_f32 v{DR+j}, v{C+j}\nv_mul_f32 v{NR+j}, v{vTMP}, v{C+j}")
    a("s_cbranch_scc1 k2_rare_long\ns_waitcnt vmcnt(0)")
    a.label("k2_rare_long")
    a(f"s_sub_u32 s{SE}, s{SE}, s{t1}\ns_subb_u32 s{SE+1}, s{SE+1}, 0")
    for j in range(4):
        a(f"v_pk_add_f32 {vr(DR+2*j,2)}, {vr(DR+2*j,2)}, 1.0 op_sel_hi:[1,0]")
    a(f"s_setpc_b64 s[{SE}:{SE+1}] ;-> {ENTRIES}")
    for p in range(R):
        q, pn = p % 2, (p + 1) % R
        a.label(f"k2_firstg{p}")
        block(p, 2 * R + 2, chain(q, 0) + chain(q, 1), cfg.get("split", 8))
        a(f"s_cbranch_scc0 k2_{'rel0_' if cfg.get('nrel', 2) else 'normal'}{pn}\ns_branch k2_event{pn}")
    for emit in later:
        emit()

    POOL0, BASE = HD, HD + 1
    vL4, vPO, vD, vS_, vE, vRow, vAA = (Y[0] + i for i in range(7))
    WV = Y[1]
    PD, QV, YY = DATA[0], DATA[0] + 4, DATA[1]
    a.label("k2_slow_static")
    a(f"""
    s_waitcnt vmcnt(0)
    s_lshr_b32 s{t1}, s2, 3
    s_mul_i32 s{t1}, s{t1}, 313
    s_and_b32 s{t2}, s2, 7
    s_mul_i32 s{t2}, s{t2}, 40
    s_add_u32 s{t3}, s{t1}, 313
    s_min_u32 s{t3}, s{t3}, {N}
    s_add_u32 s{t1}, s{t1}, s{t2}
    s_add_u32 s{t2}, s{t1}, 40
    s_min_u32 s{t3}, s{t3}, s{t2}
    v_add_u32 v{T}, s{t1}, v{L}
    v_cmp_gt_u32 vcc, s{t3}, v{T}
    v_mov_b32 v{T+1}, {N}
    v_lshlrev_b32 v{T+2}, 2, v{L}
    v_cndmask_b32 v{T}, v{T+1}, v{T}, vcc
    v_lshlrev_b32 v{T}, 9, v{T}
    ds_write_b32 v{T+2}, v{T} offset:{OUTOFF}
    """)
    a("s_branch k2_slow_go")
    a.label("k2_slow")
    a(f"v_subrev_u32 v{vFRA}, {G2[5][0]*128}, v{vFRA}\nv_subrev_u32 v{vFRB}, {G2[5][0]*128}, v{vFRB}")
    a.label("k2_slow_go")
    a(f"""
    s_setprio 0
    s_waitcnt vmcnt(0) lgkmcnt(0)
    s_load_dwordx16 s[4:19], s[0:1], 0
    s_waitcnt lgkmcnt(0)
    s_barrier
    s_lshr_b32 s{POOL0}, s2, 3
    s_mul_i32 s{POOL0}, s{POOL0}, 313
    v_lshlrev_b32 v{vL4}, 2, v{L}
    v_lshlrev_b32 v{T}, 2, v0
    v_lshlrev_b32 v{T+1}, 4, v0
    v_mov_b32 v{T+2}, -1
    v_mov_b32 v{T+4}, 0
    v_mov_b32 v{T+5}, 0
    v_mov_b32 v{T+6}, 0
    v_mov_b32 v{T+7}, 0
    v_cmp_gt_u32 vcc, 320, v0
    s_nop 1
    v_cndmask_b32 v{T+2}, 0, v{T+2}, vcc
    ds_write_b32 v{T}, v{T+2} offset:{MAP}
    v_add_u32 v{T+1}, {EXP}, v{T+1}
    """)
    for i in range(10):
        if i == 8:
            a(f"v_add_u32 v{T+1}, 65536, v{T+1}")
        a(f"ds_write_b128 v{T+1}, {vr(T+4,4)} offset:{(i % 8)*8192}")
    srd(a, X0, S_W1, 513 * 1024)
    a(f"""
    v_lshrrev_b32 v{T}, 3, v{L}
    v_and_b32 v{T+2}, 7, v{L}
    s_mov_b32 s{t1}, {SL}
    v_mul_lo_u32 v{vPO}, v{T}, s{t1}
    v_lshl_add_u32 v{vPO}, v{T+2}, 4, v{vPO}
    v_lshlrev_b32 v{T}, 7, v{T}
    v_lshl_add_u32 v{T}, v{T+2}, 2, v{T}
    s_mov_b32 s{t1}, {512*1024}
    """)
    for j in range(8):
        a(f"buffer_load_ushort v{WV+j}, v{T}, s[{X0}:{X0+3}], s{t1} offen offset:{(16*(j & 3) + (j >> 2))*2}")
    a(f"""
    s_waitcnt lgkmcnt(0)
    s_barrier
    ds_read_b32 v{T}, v{vL4} offset:{OUTOFF}
    s_waitcnt lgkmcnt(0)
    v_lshrrev_b32 v{T}, 9, v{T}
    v_cmp_gt_u32 vcc, {N}, v{T}
    v_cmp_gt_u32 s[{SX}:{SX+1}], 40, v{L}
    v_subrev_u32 v{T}, s{POOL0}, v{T}
    v_lshlrev_b32 v{T}, 2, v{T}
    s_and_b64 exec, vcc, s[{SX}:{SX+1}]
    ds_write_b32 v{T}, v{L} offset:{MAP}
    s_mov_b64 exec, -1
    s_mov_b32 s{t1}, {C_NLOG2E}
    s_waitcnt vmcnt(0)
    """)
    for j in range(8):
        a(f"v_lshlrev_b32 v{WV+j}, 16, v{WV+j}\nv_mul_f32 v{WV+j}, s{t1}, v{WV+j}")
    srd(a, X0, S_DST, E * 4)
    srd(a, X1, S_SRC, E * 4)
    srd(a, X2, S_E, E * 2)
    a(f"""
    s_lshl_b32 s{BASE}, s{S_WAVE}, 6
    v_lshlrev_b32 v{T+1}, 1, v{L}
    s_waitcnt lgkmcnt(0)
    s_barrier
    """)
    a.label("k2_slow_scan")
    a(f"""
    s_lshl_b32 s{t1}, s{BASE}, 2
    s_lshl_b32 s{t2}, s{BASE}, 1
    buffer_load_dword v{vD}, v{vL4}, s[{X0}:{X0+3}], s{t1} offen
    buffer_load_dword v{vS_}, v{vL4}, s[{X1}:{X1+3}], s{t1} offen
    buffer_load_ushort v{vE}, v{T+1}, s[{X2}:{X2+3}], s{t2} offen
    s_waitcnt vmcnt(0)
    v_subrev_u32 v{vRow}, s{POOL0}, v{vD}
    v_min_u32 v{vRow}, 319, v{vRow}
    v_lshlrev_b32 v{vRow}, 2, v{vRow}
    ds_read_b32 v{vRow}, v{vRow} offset:{MAP}
    v_lshlrev_b32 v{vE}, 16, v{vE}
    s_waitcnt lgkmcnt(0)
    v_cmp_le_i32 s[{SX}:{SX+1}], 0, v{vRow}
    s_nop 3
    """)
    a.label("k2_slow_edge")
    a(f"""
    s_cmp_eq_u64 s[{SX}:{SX+1}], 0
    s_cbranch_scc1 k2_slow_next
    s_ff1_i32_b64 s{t1}, s[{SX}:{SX+1}]
    s_bitset0_b64 s[{SX}:{SX+1}], s{t1}
    v_readlane_b32 s{t2}, v{vS_}, s{t1}
    v_readlane_b32 s{t3}, v{vD}, s{t1}
    v_readlane_b32 s{t4}, v{vE}, s{t1}
    v_readlane_b32 s{t1}, v{vRow}, s{t1}
    s_lshl_b32 s{t2}, s{t2}, 7
    s_lshl_b32 s{t3}, s{t3}, 7
    s_nop 3
    buffer_load_dwordx4 {vr(PD,4)}, v{vPO}, s[{PS}:{PS+3}], s{t2} offen
    buffer_load_dwordx4 {vr(QV,4)}, v{vPO}, s[{QS}:{QS+3}], s{t3} offen
    s_lshl_b32 s{t2}, s{t1}, 11
    s_add_u32 s{t2}, s{t2}, {EXP}
    v_add_u32 v{vAA}, s{t2}, v{vL4}
    s_lshl_b32 s{t1}, s{t1}, 2
    v_mov_b32 v{T+2}, s{t1}
    s_mov_b64 exec, 1
    ds_add_u32 v{T+2}, v{vONE} offset:{DEGC}
    s_mov_b64 exec, -1
    s_waitcnt vmcnt(0)
    """)
    for j in range(8):
        if j % 2 == 0:
            a(f"v_lshlrev_b32 v{T+4}, 16, v{PD+j//2}\nv_lshlrev_b32 v{T+5}, 16, v{QV+j//2}")
        else:
            a(f"v_and_b32 v{T+4}, 0xffff0000, v{PD+j//2}\nv_and_b32 v{T+5}, 0xffff0000, v{QV+j//2}")
        a(f"""
        v_fma_f32 v{T+5}, s{t4}, v{WV+j}, v{T+5}
        v_add_f32 v{T+4}, v{T+4}, v{T+5}
        v_exp_f32 v{T+5}, v{T+4}
        s_nop 0
        v_add_f32 v{T+5}, 1.0, v{T+5}
        v_rcp_f32 v{T+5}, v{T+5}
        s_nop 0
        v_mul_f32 v{YY+j}, v{T+4}, v{T+5}
        ds_add_f32 v{vAA}, v{YY+j} offset:{256*j}
        """)
    a("s_branch k2_slow_edge")
    a.label("k2_slow_next")
    a(f"""
    s_add_u32 s{BASE}, s{BASE}, 512
    s_cmp_lt_u32 s{BASE}, {E}
    s_cbranch_scc1 k2_slow_scan
    s_waitcnt lgkmcnt(0)
    s_barrier
    ds_read_b32 v{T}, v{vL4} offset:{DEGC}
    s_waitcnt lgkmcnt(0)
    v_cvt_f32_u32 v{T}, v{T}
    ds_write_b32 v{vL4}, v{T} offset:{DEGF}
    """)
    for i in range(5):
        a(f"""
        s_add_u32 s{t1}, s{S_WAVE}, {8*i}
        s_lshl_b32 s{t2}, s{t1}, 11
        s_add_u32 s{t2}, s{t2}, {EXP}
        v_add_u32 v{vAA}, s{t2}, v{vL4}
        s_mul_i32 s{t1}, s{t1}, {HS}
        s_add_u32 s{t1}, s{t1}, {HB}
        v_add_u32 v{T+2}, s{t1}, v{vL16}
        """)
        for j in range(8):
            a(f"ds_read_b32 v{YY+j}, v{vAA} offset:{256*j}")
        a("s_waitcnt lgkmcnt(0)")
        for j in range(4):
            a(f"v_cvt_pk_bf16_f32 v{T+4+j}, v{YY+2*j}, v{YY+2*j+1}")
        a(f"ds_write_b128 v{T+2}, {vr(T+4,4)}")
    a("s_waitcnt lgkmcnt(0)\ns_barrier")
    acc_init()
    out_addr_reads()
    a(f"s_waitcnt lgkmcnt(0)\ns_mov_b32 s{GS}, 0")
    for k in range(10):
        a(f"v_add_u32 v{OO+k}, v{OO+k}, v{vCOL}")
    a.label("k2_slow_gemm")
    w2load([0, 1])
    first_reads(steps_by_slice(2))
    a("s_waitcnt vmcnt(0)")
    gemm2_run(steps_by_slice(2))
    a(f"""
    v_add_u32 v{vFRA}, 256, v{vFRA}
    v_add_u32 v{vFRB}, 256, v{vFRB}
    s_add_u32 s{W2O}, s{W2O}, 8192
    s_add_u32 s{GS}, s{GS}, 1
    s_cmp_lt_u32 s{GS}, 4
    s_cbranch_scc1 k2_slow_gemm
    s_mov_b32 s{t2}, {C_NLN2}
    s_nop 7
    """)
    for tt in range(3):
        a("\n".join(out_ops(tt)))
    a("s_branch k2_end")
    a.label("k2_exit")
    a("s_endpgm")
    return a, (256 if pr.on else v.n)
```
